```python
import torch

def _softmax(x, axis=-1):
    return torch.softmax(x, dim=axis)
def _gelu(x):
    return torch.nn.functional.gelu(x, approximate="tanh")
def _silu(x):
    return torch.nn.functional.silu(x)
def _sigmoid(x):
    return torch.sigmoid(x)
def _layernorm(x, axis=-1, eps=1e-5):
    m = x.mean(dim=axis, keepdim=True)
    v = x.var(dim=axis, keepdim=True, unbiased=False)
    return (x - m) / torch.sqrt(v + eps)
def _scatter_add(tgt, idx, src, axis=0):
    return tgt.clone().index_add_(axis, idx, src)
def _segment_sum(src, seg, n):
    out = torch.zeros((n,) + src.shape[1:], dtype=src.dtype)
    return out.index_add_(0, seg, src)
def _pad(x, pw):
    flat = tuple(v for pair in reversed(pw) for v in pair)
    return torch.nn.functional.pad(x, flat)

kernel_name = 'standalone__swiglu_ffn__sampling'

def setup_inputs():

    _w = (lambda a: (lambda t: t.to(torch.bfloat16) if t.is_floating_point() else t)(torch.as_tensor(a)))
    B, S, D, F = 16, 4, 1024, 3584
    return {
        "x": _w((lambda *s: torch.randn(*s, dtype=torch.bfloat16) * 0.05)(B, S, D)),
        "w_gate": _w((lambda *s: torch.randn(*s, dtype=torch.bfloat16) * 0.05)(D, F)),
        "w_up": _w((lambda *s: torch.randn(*s, dtype=torch.bfloat16) * 0.05)(D, F)),
        "w_down": _w((lambda *s: torch.randn(*s, dtype=torch.bfloat16) * 0.05)(F, D)),
    }

def reference(x, w_gate, w_up, w_down):
    g = _silu(x @ w_gate)
    u = x @ w_up
    return (g * u) @ w_down
```

```python
HEADER = """; Kernarg layout for this problem (56 bytes, ptrs only, base s[0:1]):
"""

class Kernel:
    def __init__(self, name, grid, block, lds=0, vgpr=256, sgpr=102, accum=None):
        self.name = name; self.grid = grid; self.block = block; self.lds = lds
        self.vgpr = vgpr; self.sgpr = sgpr; self.accum = accum
        self.lines = []
    def __call__(self, s):
        for l in s.strip("\n").split("\n"):
            l = l.strip()
            if not l: continue
            if l.endswith(":"): self.lines.append(l)
            else: self.lines.append("    " + l)
    def text(self):
        return (f".text\n.globl {self.name}\n.p2align 8\n.type {self.name},@function\n{self.name}:\n"
                + "\n".join(self.lines) + "\n")
    def desc(self):
        acc = self.accum if self.accum is not None else min(256, (self.vgpr + 3) // 4 * 4)
        return (f'.section .rodata,"a"\n.p2align 6\n.amdhsa_kernel {self.name}\n'
                f"  .amdhsa_next_free_vgpr {self.vgpr}\n  .amdhsa_next_free_sgpr {self.sgpr}\n"
                f"  .amdhsa_accum_offset {acc}\n  .amdhsa_group_segment_fixed_size 0\n"
                f"  .amdhsa_kernarg_size 56\n  .amdhsa_user_sgpr_count 2\n"
                f"  .amdhsa_user_sgpr_kernarg_segment_ptr 1\n  .amdhsa_system_sgpr_workgroup_id_x 1\n"
                f"  .amdhsa_float_denorm_mode_32 3\n"
                f".end_amdhsa_kernel\n")

def emit(kernels, launches=None, single=False, comments=""):
    if launches is None: launches = kernels
    out = HEADER + comments
    if single:
        k = kernels[0]
        out += f"; @launch grid=({k.grid},1,1) block=({k.block},1,1) lds={k.lds}\n"
    else:
        for k in launches:
            out += f"; @launch kernel={k.name} grid=({k.grid},1,1) block=({k.block},1,1) lds={k.lds}\n"
    out += '.amdgcn_target "amdgcn-amd-amdhsa--gfx950"\n'
    for k in kernels: out += k.text()
    for k in kernels: out += k.desc()
    return out

def srd(k, d, b, nbytes):
    k(f"""
    s_mov_b32 s{d}, s{b}
    s_and_b32 s{d+1}, s{b+1}, 0xffff
    s_mov_b32 s{d+2}, {nbytes:#x}
    s_mov_b32 s{d+3}, 0x00020000
    """)
```

```python
import sys
from asmlib import *
def silu_mul(k, g, u, t):
    t0,t1 = t
    k(f"""
    v_cvt_pk_bf16_f32 v{t0}, v{g}, v{u}
    v_lshlrev_b32 v{g}, 16, v{t0}
    v_and_b32 v{u}, 0xffff0000, v{t0}
    v_mul_f32 v{t0}, 0xbfb8aa3b, v{g}
    v_exp_f32 v{t0}, v{t0}
    s_nop 0
    v_add_f32 v{t0}, 1.0, v{t0}
    v_rcp_f32 v{t0}, v{t0}
    s_nop 0
    v_mul_f32 v{g}, v{g}, v{t0}
    v_cvt_pk_bf16_f32 v{t0}, v{g}, v{g}
    v_lshlrev_b32 v{g}, 16, v{t0}
    v_mul_f32 v{g}, v{g}, v{u}
    """)

k1 = Kernel("ffn1_kernel", 224, 256, vgpr=64, sgpr=48)
k = k1
k("""
s_cmp_ge_u32 s2, 224
s_cbranch_scc1 L1_end
s_load_dwordx4 s[4:7], s[0:1], 0
s_load_dwordx2 s[8:9], s[0:1], 16
s_load_dwordx2 s[10:11], s[0:1], 48
s_waitcnt lgkmcnt(0)
""")
srd(k, 12, 4, 64*1024*2)
srd(k, 16, 6, 1024*3584*2)
srd(k, 20, 8, 1024*3584*2)
srd(k, 24, 10, 64*3584*2)
k("""
v_and_b32 v1, 15, v0          ; l%16
v_bfe_u32 v2, v0, 4, 2        ; kgroup
v_lshrrev_b32 v3, 6, v0       ; wave
; x offset: (16*w + l%16)*2048 + kg*16
v_lshl_add_u32 v4, v3, 4, v1
v_lshlrev_b32 v4, 11, v4
v_lshl_add_u32 v4, v2, 4, v4
; w offset: (kg*8)*7168 + (16*wg + l%16)*2
s_lshl_b32 s3, s2, 4
v_add_u32 v5, s3, v1
v_lshlrev_b32 v5, 1, v5
s_mov_b32 s30, 57344
v_mad_u32_u24 v5, v2, s30, v5
v_mov_b32 v8, 0
v_mov_b32 v9, 0
v_mov_b32 v10, 0
v_mov_b32 v11, 0
v_mov_b32 v12, 0
v_mov_b32 v13, 0
v_mov_b32 v14, 0
v_mov_b32 v15, 0
s_mov_b32 s31, 0
s_mov_b32 s32, 0
L1_loop:
buffer_load_dwordx4 v[16:19], v4, s[12:15], s31 offen
""")
for j in range(8):
    k(f"s_add_u32 s33, s32, {j*7168}")
    k(f"buffer_load_ushort v{32+j}, v5, s[16:19], s33 offen")
    k(f"buffer_load_ushort v{40+j}, v5, s[20:23], s33 offen")
k("s_waitcnt vmcnt(0)")
for j in range(8):
    k(f"v_lshl_or_b32 v{20+j}, v{33+2*j}, 16, v{32+2*j}")
k("""
s_nop 1
v_mfma_f32_16x16x32_bf16 v[8:11], v[20:23], v[16:19], v[8:11]
v_mfma_f32_16x16x32_bf16 v[12:15], v[24:27], v[16:19], v[12:15]
s_add_u32 s31, s31, 64
s_add_u32 s32, s32, 229376
s_nop 7
s_cmp_lt_u32 s31, 2048
s_cbranch_scc1 L1_loop
s_nop 7
""")
for i in range(4):
    silu_mul(k, 8+i, 12+i, (28, 29))
k("""
v_cvt_pk_bf16_f32 v8, v8, v9
v_cvt_pk_bf16_f32 v9, v10, v11
; h offset = (16w + l%16)*7168 + (16*wg + 4*kg)*2
v_lshl_add_u32 v6, v3, 4, v1
s_mov_b32 s30, 7168
v_mul_lo_u32 v6, v6, s30
v_lshl_add_u32 v6, v2, 3, v6
s_lshl_b32 s3, s2, 5
buffer_store_dwordx2 v[8:9], v6, s[24:27], s3 offen
s_waitcnt vmcnt(0)
L1_end:
s_endpgm
""")

k2 = Kernel("ffn2_kernel", 256, 64, vgpr=64, sgpr=48)
k = k2
k("""
s_cmp_ge_u32 s2, 256
s_cbranch_scc1 L2_end
s_load_dwordx4 s[4:7], s[0:1], 24
s_load_dwordx2 s[10:11], s[0:1], 48
s_waitcnt lgkmcnt(0)
""")
srd(k, 12, 10, 64*3584*2)
srd(k, 16, 4, 1024*3584*2)
srd(k, 24, 6, 64*1024*2)
k("""
v_and_b32 v1, 15, v0          ; l%16
v_bfe_u32 v2, v0, 4, 2        ; kgroup
s_and_b32 s28, s2, 3          ; mb
s_lshr_b32 s29, s2, 2         ; nb
s_lshl_b32 s3, s28, 4
v_add_u32 v4, s3, v1
s_mov_b32 s30, 7168
v_mul_lo_u32 v4, v4, s30
v_lshl_add_u32 v4, v2, 4, v4
s_lshl_b32 s3, s29, 4
v_add_u32 v5, s3, v1
v_lshlrev_b32 v5, 1, v5
v_lshl_add_u32 v5, v2, 14, v5
v_mov_b32 v8, 0
v_mov_b32 v9, 0
v_mov_b32 v10, 0
v_mov_b32 v11, 0
s_mov_b32 s31, 0
s_mov_b32 s32, 0
L2_loop:
buffer_load_dwordx4 v[16:19], v4, s[12:15], s31 offen
""")
for j in range(8):
    k(f"s_add_u32 s33, s32, {j*2048}")
    k(f"buffer_load_ushort v{32+j}, v5, s[16:19], s33 offen")
k("s_waitcnt vmcnt(0)")
for j in range(4):
    k(f"v_lshl_or_b32 v{20+j}, v{33+2*j}, 16, v{32+2*j}")
k("""
s_nop 1
v_mfma_f32_16x16x32_bf16 v[8:11], v[20:23], v[16:19], v[8:11]
s_add_u32 s31, s31, 64
s_add_u32 s32, s32, 65536
s_nop 7
s_cmp_lt_u32 s31, 7168
s_cbranch_scc1 L2_loop
s_nop 7
v_cvt_pk_bf16_f32 v8, v8, v9
v_cvt_pk_bf16_f32 v9, v10, v11
s_lshl_b32 s3, s28, 4
v_add_u32 v6, s3, v1
v_lshlrev_b32 v6, 11, v6
v_lshl_add_u32 v6, v2, 3, v6
s_lshl_b32 s3, s29, 5
buffer_store_dwordx2 v[8:9], v6, s[24:27], s3 offen
s_waitcnt vmcnt(0)
L2_end:
s_endpgm
""")
ke = Kernel("empty_kernel", 256, 64, vgpr=8, sgpr=16)
ke("s_endpgm")
open("base.s","w").write(emit([k1,k2]))
open("base_e1.s","w").write(emit([k1,k2,ke]))
open("base_e4.s","w").write(emit([k1,k2,ke],[k1,k2,ke,ke,ke,ke]))
open("base_e16.s","w").write(emit([k1,k2,ke],[k1,k2]+[ke]*16))
open("base_p16.s","w").write(emit([k1,k2,ke],[ke]*16+[k1,k2]))
open("base_p4.s","w").write(emit([k1,k2,ke],[ke]*4+[k1,k2]))
```

```python
HEADER = """; Kernarg layout for this problem (56 bytes, ptrs only, base s[0:1]):
"""

class Kernel:
    def __init__(self, name, grid, block, lds=0, vgpr=256, sgpr=102, accum=None):
        self.name = name; self.grid = grid; self.block = block; self.lds = lds
        self.vgpr = vgpr; self.sgpr = sgpr; self.accum = accum
        self.lines = []
    def __call__(self, s):
        for l in s.strip("\n").split("\n"):
            l = l.strip()
            if not l: continue
            if l.endswith(":"): self.lines.append(l)
            else: self.lines.append("    " + l)
    def text(self):
        return (f".text\n.globl {self.name}\n.p2align 8\n.type {self.name},@function\n{self.name}:\n"
                + "\n".join(self.lines) + "\n")
    def desc(self):
        acc = self.accum if self.accum is not None else min(256, (self.vgpr + 3) // 4 * 4)
        return (f'.section .rodata,"a"\n.p2align 6\n.amdhsa_kernel {self.name}\n'
                f"  .amdhsa_next_free_vgpr {self.vgpr}\n  .amdhsa_next_free_sgpr {self.sgpr}\n"
                f"  .amdhsa_accum_offset {acc}\n  .amdhsa_group_segment_fixed_size 0\n"
                f"  .amdhsa_kernarg_size 56\n  .amdhsa_user_sgpr_count 2\n"
                f"  .amdhsa_user_sgpr_kernarg_segment_ptr 1\n  .amdhsa_system_sgpr_workgroup_id_x 1\n"
                f"  .amdhsa_float_denorm_mode_32 3\n"
                f".end_amdhsa_kernel\n")

def emit(kernels, launches=None, single=False, comments=""):
    if launches is None: launches = kernels
    out = HEADER + comments
    if single:
        k = kernels[0]
        out += f"; @launch grid=({k.grid},1,1) block=({k.block},1,1) lds={k.lds}\n"
    else:
        for k in launches:
            out += f"; @launch kernel={k.name} grid=({k.grid},1,1) block=({k.block},1,1) lds={k.lds}\n"
    out += '.amdgcn_target "amdgcn-amd-amdhsa--gfx950"\n'
    for k in kernels: out += k.text()
    for k in kernels: out += k.desc()
    return out

def srd(k, d, b, nbytes):
    k(f"""
    s_mov_b32 s{d}, s{b}
    s_and_b32 s{d+1}, s{b+1}, 0xffff
    s_mov_b32 s{d+2}, {nbytes:#x}
    s_mov_b32 s{d+3}, 0x00020000
    """)

STAMP_OFF = 128 << 20
class Stamps:
    def __init__(self, k, base, on=True):
        self.k = k; self.base = base; self.n = 0; self.on = on
    def stamp(self, wait=True):
        if not self.on: return
        r = self.base + 2 * self.n
        self.k(f"s_memrealtime s[{r}:{r+1}]")
        if wait: self.k("s_waitcnt lgkmcnt(0)")
        self.n += 1
    def flush(self, ws_lo, rec_sgpr, vtmp, stmp, extra=()):
        if not self.on: return
        k = self.k
        k("s_waitcnt lgkmcnt(0)")
        k(f"""
        s_mov_b32 s{stmp}, s{ws_lo}
        s_and_b32 s{stmp+1}, s{ws_lo+1}, 0xffff
        s_mov_b32 s{stmp+2}, 0x10000000
        s_mov_b32 s{stmp+3}, 0x00020000
        s_mov_b64 exec, 1
        s_lshl_b32 s{rec_sgpr}, s{rec_sgpr}, 6
        s_add_u32 s{rec_sgpr}, s{rec_sgpr}, {STAMP_OFF:#x}
        v_mov_b32 v{vtmp}, 0
        """)
        for i in range(self.n):
            k(f"v_mov_b32 v{vtmp+1}, s{self.base+2*i}")
            k(f"buffer_store_dword v{vtmp+1}, v{vtmp}, s[{stmp}:{stmp+3}], s{rec_sgpr} offen offset:{4*i}")
        for j, sr in enumerate(extra):
            k(f"v_mov_b32 v{vtmp+1}, s{sr}")
            k(f"buffer_store_dword v{vtmp+1}, v{vtmp}, s[{stmp}:{stmp+3}], s{rec_sgpr} offen offset:{4*(15-j)}")
        k("s_waitcnt vmcnt(0)")
```

```python
import sys
from asmlib import *
NAME = "standalone__swiglu_ffn__sampling_kernel"
WB = 1024*3584*2
GU_OFF   = 0
GU_MAT   = 8*2*2*14*1024
FL_OFF   = 0x100000
P_OFF    = 0x200000
EP_OFF   = 0x400000
WS_USED  = 0x400100
XR = 0; WR = 32768; WD = 98304; RED = 155648; LDS = 163840
SPIN = 200000

def gen(fn, stamps=False, opt=None):
    o = dict(D=4, pf_code=True, pf_c3=True, pf_wd=0, wd_first=28)
    o.update(opt or {})
    k = Kernel(NAME, 256, 320, vgpr=256, sgpr=100, lds=LDS)
    st = Stamps(k, 64, on=stamps)
    st.stamp(False)
    k(f"""
    s_cmp_ge_u32 s2, 256
    s_cbranch_scc1 L_end
    s_load_dwordx8 s[4:11], s[0:1], 0
    s_load_dwordx4 s[12:15], s[0:1], 32
    s_load_dwordx2 s[16:17], s[0:1], 48
    v_lshrrev_b32 v1, 6, v0
    v_and_b32 v0, 63, v0
    s_and_b32 s19, s2, 7
    v_readfirstlane_b32 s18, v1
    s_lshr_b32 s20, s2, 3
    s_nop 2
    s_cmp_eq_u32 s18, 4
    s_cbranch_scc0 L_compute
    """)
    k(f"""
    v_lshrrev_b32 v1, 3, v0            ; r8 = l>>3
    v_and_b32 v2, 7, v0                ; q
    v_lshrrev_b32 v3, 4, v0            ; l>>4
    ; x voffsets v8..v11
    v_xor_b32 v4, v2, v3
    v_lshlrev_b32 v4, 4, v4
    v_lshl_add_u32 v8, v1, 11, v4
    v_xor_b32 v9, 64, v8
    v_add_u32 v9, {16384-1024}, v9
    v_add_u32 v10, {2*(16384-1024)}, v8
    v_add_u32 v11, {2*(16384-1024)}, v9
    ; W voffsets v12..v19
    v_and_b32 v4, 1, v3
    v_lshlrev_b32 v4, 5, v4
    v_lshlrev_b32 v5, 4, v2
    v_xor_b32 v4, v4, v5
    v_mul_u32_u24 v6, 7168, v1
    v_add_u32 v12, v6, v4
    v_xor_b32 v13, 64, v12
    v_add_u32 v13, {57344-1024}, v13
    v_add_u32 v14, {2*(57344-1024)}, v12
    v_add_u32 v15, {2*(57344-1024)}, v13
    v_add_u32 v16, {4*57344}, v12
    v_add_u32 v17, {4*57344}, v13
    v_add_u32 v18, {4*57344}, v14
    v_add_u32 v19, {4*57344}, v15
    v_lshlrev_b32 v4, 5, v3
    v_xor_b32 v4, v4, v5
    v_lshl_add_u32 v20, v1, 11, v4
    v_add_u32 v21, {16384-1024}, v20
    v_add_u32 v22, {2*(16384-1024)}, v20
    v_add_u32 v23, {3*(16384-1024)}, v20
    s_lshr_b32 s40, s20, 2             ; cg
    s_mul_i32 s41, s19, 7
    s_add_u32 s41, s41, s40
    s_lshl_b32 s41, s41, 7
    s_and_b32 s42, s20, 1              ; mh
    s_lshl_b32 s43, s42, 16
    s_lshl_b32 s44, s42, 3
    s_lshr_b32 s3, s20, 1
    s_add_u32 s44, s44, s3
    s_and_b32 s44, s44, 15
    s_mul_i32 s45, s19, {448*2048}
    s_and_b32 s3, s20, 15
    s_lshl_b32 s3, s3, 7
    s_add_u32 s45, s45, s3
    s_lshr_b32 s46, s20, 4
    s_bitcmp1_b32 s20, 1
    s_waitcnt lgkmcnt(0)
    s_cselect_b32 s28, s8, s6
    s_cselect_b32 s29, s9, s7
    s_and_b32 s29, s29, 0xffff
    s_mov_b32 s30, {WB:#x}
    s_mov_b32 s31, 0x00020000
    """)
    srd(k, 24, 4, 131072)
    srd(k, 32, 10, WB)
    st.stamp(False)
    k("s_cmp_ge_u32 s20, 28\ns_cbranch_scc1 L_idle_loader")
    D = o['D']
    def stage(slot_imm=None):
        k(f"""
        s_mul_i32 s48, s44, {64*7168}
        s_add_u32 s48, s48, s41
        s_lshl_b32 s49, s44, 7
        s_add_u32 s49, s49, s43
        s_lshl_b32 s3, s47, 13
        s_add_u32 m0, s3, {WR}
        s_add_u32 s44, s44, 1
        """)
        for j in range(4):
            k(f"buffer_load_dwordx4 v{12+j}, s[28:31], s48 offen offset:{j*1024} lds")
        k(f"s_add_u32 m0, s3, {WR+4096}\ns_and_b32 s44, s44, 15")
        for j in range(4):
            k(f"buffer_load_dwordx4 v{16+j}, s[28:31], s48 offen offset:{j*1024} lds")
        k(f"s_lshl_b32 m0, s47, 12\ns_add_u32 s47, s47, 1")
        for j in range(4):
            k(f"buffer_load_dwordx4 v{8+j}, s[24:27], s49 offen offset:{j*1024} lds")
        k("s_and_b32 s47, s47, 7")
    def wd_group(g):
        k(f"""
        s_mul_i32 s3, s46, 7
        s_add_u32 s3, s3, {g}
        s_cmp_ge_u32 s3, 14
        s_cselect_b32 s50, 14, 0
        s_sub_u32 s3, s3, s50
        s_lshl_b32 s50, s3, 16
        s_add_u32 s50, s50, s45
        s_lshl_b32 s3, s3, 12
        s_add_u32 m0, s3, {WD}
        s_nop 0
        """)
        for j in range(4):
            k(f"buffer_load_dwordx4 v{20+j}, s[32:35], s50 offen offset:{j*1024} lds")
    k("s_mov_b32 s47, 0\ns_mov_b32 s51, 0")
    k("L_pro:")
    stage()
    k(f"s_add_u32 s51, s51, 1\ns_cmp_lt_u32 s51, {D}\ns_cbranch_scc1 L_pro")
    k("L_ld:")
    k(f"s_waitcnt vmcnt({12*(D-1)})\ns_barrier")
    stage()
    k(f"s_add_u32 s51, s51, 1\ns_cmp_lt_u32 s51, 16\ns_cbranch_scc1 L_ld")
    st.stamp(False)
    ng_first = o['wd_first']//4
    per = [ng_first*(t+1)//D - ng_first*t//D for t in range(D)]
    issued = 0
    for t in range(D):
        k(f"s_waitcnt vmcnt({12*(D-1-t)+4*issued})\ns_barrier")
        if t == D-1: st.stamp(False)
        for g in range(issued, issued+per[t]): wd_group(g)
        issued += per[t]
    k("s_barrier")
    for g in range(issued, 14): wd_group(g)
    k("s_branch L_ld_tail")
    k("L_idle_loader:")
    if o['pf_code']:
        k(f"""
        s_getpc_b64 s[52:53]
        L_pc:
        s_sub_u32 s52, s52, L_pc-{NAME}
        s_subb_u32 s53, s53, 0
        v_lshlrev_b32 v24, 7, v0
        v_min_u32 v24, L_end-{NAME}, v24
        global_load_dword v25, v24, s[52:53]
        """)
    if o['pf_c3']:
        k(f"""
        s_add_u32 s3, s19, 3
        s_and_b32 s3, s3, 7
        s_cmp_eq_u32 s3, 7
        s_cbranch_scc1 L_noc3
        s_mul_i32 s52, s19, 7
        s_add_u32 s52, s52, s3
        s_lshl_b32 s52, s52, 7
        s_lshl_b32 s3, s3, 1
        s_bfe_u32 s53, s20, 0x10001
        s_add_u32 s3, s3, s53
        s_lshl_b32 s53, s42, 3
        s_add_u32 s53, s53, s3
        v_mul_u32_u24 v24, 7168, v0
        """)
        for u in range(4, 8):
            k(f"""
            s_add_u32 s3, s53, {u}
            s_and_b32 s3, s3, 15
            s_mul_i32 s3, s3, {64*7168}
            s_add_u32 s3, s3, s52
            buffer_load_dword v25, v24, s[28:31], s3 offen
            """)
        k("L_noc3:")
    if o['pf_wd']:
        n = o['pf_wd']
        k(f"""
        v_lshlrev_b32 v24, 7, v0
        s_sub_u32 s3, s20, 28
        s_mul_i32 s3, s3, {112*2048}
        s_mul_i32 s52, s19, {448*2048}
        s_add_u32 s52, s52, s3
        s_mov_b32 s53, 0
        L_pfwd:
        buffer_load_dword v25, v24, s[32:35], s52 offen
        s_add_u32 s52, s52, 8192
        s_add_u32 s53, s53, 1
        s_cmp_lt_u32 s53, {n}
        s_cbranch_scc1 L_pfwd
        """)
    for g in range(14): wd_group(g)
    if stamps: st.n = 2; st.stamp(False); st.stamp(False)
    k("L_ld_tail:")
    k("s_waitcnt vmcnt(0)")
    st.stamp(False)
    k("s_barrier")
    if stamps:
        k("s_mul_i32 s3, s2, 5\ns_add_u32 s3, s3, s18")
        st.flush(16, 3, 1, 24)
    k("s_endpgm")

    k("L_compute:")
    st.n = 1
    k(f"""
    s_and_b32 s21, s18, 1              ; tb
    s_lshr_b32 s22, s18, 1
    v_and_b32 v1, 15, v0               ; l%16
    v_lshrrev_b32 v2, 4, v0            ; g
    v_lshrrev_b32 v3, 2, v1            ; r
    v_and_b32 v4, 3, v0                ; l%4
    ; x read addresses v8 (ks0), v9 (ks1):  token*128 + ((g ^ f)*16), token = 16tb + l%16, f = (token>>1)&7
    v_lshrrev_b32 v5, 1, v1
    v_xor_b32 v5, v5, v2
    v_lshlrev_b32 v5, 4, v5
    v_lshl_add_u32 v8, v1, 7, v5
    s_lshl_b32 s3, s21, 11
    v_add_u32 v8, s3, v8
    v_xor_b32 v9, 64, v8
    ; W read addresses v10 (cb even), v11 (cb odd): WR + (8g + r)*128 + ((cb ^ s)*32) + (l%4)*8 ; s = (r>>1) | (g&1)<<1
    v_lshl_add_u32 v5, v2, 3, v3
    v_lshlrev_b32 v5, 7, v5
    v_lshl_add_u32 v5, v4, 3, v5
    v_and_b32 v6, 1, v2
    v_lshlrev_b32 v6, 1, v6
    v_lshrrev_b32 v7, 1, v3
    v_or_b32 v6, v6, v7
    s_lshl_b32 s3, s22, 1
    v_xor_b32 v6, s3, v6
    v_lshl_add_u32 v10, v6, 5, v5
    v_add_u32 v10, {WR}, v10
    v_xor_b32 v11, 32, v10
    ; Wd read addresses v12..v15 (local q -> cb = q ^ 2kh): WD + kh*28672 + (4g + r)*128 + ((cb ^ s)*32) + (l%4)*8 ; s = (2g + (r>>1))&3
    v_lshl_add_u32 v5, v2, 2, v3
    v_lshrrev_b32 v6, 1, v5
    v_and_b32 v6, 3, v6
    v_xor_b32 v6, s3, v6
    v_lshlrev_b32 v5, 7, v5
    v_lshl_add_u32 v5, v4, 3, v5
    v_lshl_add_u32 v12, v6, 5, v5
    s_mul_i32 s3, s22, 28672
    s_add_u32 s3, s3, {WD}
    v_add_u32 v12, s3, v12
    v_xor_b32 v13, 32, v12
    v_xor_b32 v14, 64, v12
    v_xor_b32 v15, 96, v12
    v_lshlrev_b32 v16, 4, v0           ; lane*16
    s_waitcnt lgkmcnt(0)
    """)
    srd(k, 24, 16, WS_USED)
    srd(k, 28, 14, 256)
    srd(k, 32, 12, 131072)
    k("v_mov_b32 v17, 0")
    st.stamp(False)
    k(f"""
    s_cmp_eq_u32 s2, 224
    s_cbranch_scc0 L_nopub
    s_cmp_eq_u32 s18, 0
    s_cbranch_scc0 L_nopub
    s_mov_b32 s3, {EP_OFF:#x}
    buffer_load_dwordx2 v[18:19], v17, s[24:27], s3 offen sc1
    s_waitcnt vmcnt(0)
    v_add_co_u32 v18, vcc, 0x9e3779b2, v18
    v_mov_b32 v20, 0x7f4a7c15
    s_nop 0
    v_addc_co_u32 v19, vcc, v19, v20, vcc
    v_or_b32 v18, 1, v18
    s_mov_b64 exec, 1
    buffer_store_dwordx2 v[18:19], v17, s[28:31], 0 offen sc1
    buffer_store_dwordx2 v[18:19], v17, s[24:27], s3 offen sc1
    s_mov_b64 exec, -1
    s_waitcnt vmcnt(0)
    L_nopub:
    s_cmp_ge_u32 s20, 28
    s_cbranch_scc1 L_ph1_done
    """)
    for r in range(8): k(f"v_mov_b32 v{24+r}, 0")
    def xr(p, ks): return 32 + 24*p + 4*ks
    def wr(p, ks, c): return 32 + 24*p + 8 + 8*ks + 4*c
    def reads(slot, p):
        for ks in range(2):
            k(f"ds_read_b128 v[{xr(p,ks)}:{xr(p,ks)+3}], v{8+ks} offset:{XR+slot*4096}")
            for c in range(2):
                for h in range(2):
                    r = wr(p, ks, c) + 2*h
                    k(f"ds_read_b64_tr_b16 v[{r}:{r+1}], v{10+c} offset:{slot*8192+ks*4096+h*512}")
    def mfmas(p):
        for ks in range(2):
            for c in range(2):
                k(f"v_mfma_f32_16x16x32_bf16 v[{24+4*c}:{27+4*c}], v[{wr(p,ks,c)}:{wr(p,ks,c)+3}], v[{xr(p,ks)}:{xr(p,ks)+3}], v[{24+4*c}:{27+4*c}]")
    k("s_barrier")
    reads(0, 0)
    k("s_mov_b32 s40, 0")
    k("L_c1:")
    for slot in range(1, 9):
        if slot == 8:
            k("s_cmp_eq_u32 s40, 1\ns_cbranch_scc1 L_c1_done")
            k("buffer_load_dwordx2 v[18:19], v17, s[28:31], 0 offen sc1")
        k("s_barrier")
        reads(slot & 7, slot & 1)
        k("s_waitcnt lgkmcnt(10)")
        mfmas((slot-1) & 1)
    k("s_mov_b32 s40, 1\ns_branch L_c1")
    k("L_c1_done:")
    k("s_waitcnt lgkmcnt(0)")
    mfmas(1)
    st.stamp(False)
    k(f"""
    s_lshl_b32 s3, s19, 1
    s_and_b32 s41, s20, 1
    s_add_u32 s3, s3, s41
    s_lshl_b32 s3, s3, 1
    s_add_u32 s42, s3, s21             ; (xcd*2+mh)*2+tb
    s_lshr_b32 s3, s20, 2
    s_lshl_b32 s3, s3, 1
    s_add_u32 s43, s3, s22
    s_mul_i32 s3, s42, 14
    s_add_u32 s3, s3, s43
    s_lshl_b32 s44, s3, 10
    s_bitcmp1_b32 s20, 1
    s_cbranch_scc1 L_up
    """)
    for p in range(4):
        k(f"v_cvt_pk_bf16_f32 v{32+p}, v{24+2*p}, v{25+2*p}")
    for p in range(4):
        k(f"v_lshlrev_b32 v{24+2*p}, 16, v{32+p}\nv_and_b32 v{25+2*p}, 0xffff0000, v{32+p}")
    for e in range(8): k(f"v_mul_f32 v{36+e}, 0xbfb8aa3b, v{24+e}")
    for e in range(8): k(f"v_exp_f32 v{36+e}, v{36+e}")
    for e in range(8): k(f"v_add_f32 v{36+e}, 1.0, v{36+e}")
    for e in range(8): k(f"v_rcp_f32 v{36+e}, v{36+e}")
    for e in range(8): k(f"v_mul_f32 v{24+e}, v{24+e}, v{36+e}")
    k(f"s_branch L_pack\nL_up:\ns_add_u32 s44, s44, {GU_MAT}\nL_pack:")
    for p in range(4):
        k(f"v_cvt_pk_bf16_f32 v{32+p}, v{24+2*p}, v{25+2*p}")
    k(f"""
    buffer_store_dwordx4 v[32:35], v16, s[24:27], s44 offen sc1
    s_barrier
    """)
    st.stamp(False)
    k(f"""
    s_cmp_ge_u32 s43, 7
    s_cselect_b32 s3, 9, 0
    s_add_u32 s3, s3, s43
    s_bfe_u32 s45, s20, 0x10001
    s_lshl_b32 s45, s45, 3
    s_add_u32 s3, s3, s45
    s_lshl_b32 s45, s42, 5
    s_add_u32 s3, s3, s45
    s_lshl_b32 s3, s3, 7
    s_add_u32 s45, s3, {FL_OFF:#x}
    s_branch L_nonce
    L_ph1_done:
    buffer_load_dwordx2 v[18:19], v17, s[28:31], 0 offen sc1
    """)
    if stamps: st.n = 2; st.stamp(False); st.stamp(False)
    k(f"""
    L_nonce:
    s_mov_b32 s40, 0
    L_nonce_loop:
    s_waitcnt vmcnt(0)
    v_readfirstlane_b32 s46, v18
    v_readfirstlane_b32 s47, v19
    s_add_u32 s40, s40, 1
    s_cmp_lg_u32 s46, 0
    s_cbranch_scc1 L_nonce_ok
    s_cmp_gt_u32 s40, {SPIN}
    s_cbranch_scc1 L_nonce_ok
    buffer_load_dwordx2 v[18:19], v17, s[28:31], 0 offen sc1
    s_branch L_nonce_loop
    L_nonce_ok:
    s_cmp_ge_u32 s20, 28
    s_cbranch_scc1 L_noflag
    s_mov_b64 exec, 1
    buffer_store_dwordx2 v[18:19], v17, s[24:27], s45 offen sc1
    s_mov_b64 exec, -1
    L_noflag:
    """)
    st.stamp(False)
    k(f"""
    s_lshl_b32 s3, s19, 1
    s_lshr_b32 s41, s20, 4             ; mh2
    s_add_u32 s3, s3, s41
    s_lshl_b32 s3, s3, 1
    s_add_u32 s42, s3, s21             ; (xcd*2+mh2)*2+tb
    s_mul_i32 s3, s42, 14
    s_mul_i32 s43, s22, 7
    s_add_u32 s3, s3, s43
    s_lshl_b32 s48, s3, 10             ; g base
    s_add_u32 s49, s48, {GU_MAT}       ; u base
    s_add_u32 s50, s48, 4096
    s_add_u32 s51, s49, 4096
    s_lshl_b32 s3, s42, 1
    s_add_u32 s3, s3, s22
    s_lshl_b32 s3, s3, 11
    s_add_u32 s45, s3, {FL_OFF:#x}
    v_and_b32 v20, 7, v0
    v_min_u32 v20, 6, v20
    v_and_b32 v21, 8, v0
    v_or_b32 v20, v20, v21
    v_lshlrev_b32 v20, 7, v20
    s_barrier
    """)
    WF = 96
    for ks in range(7):
        for q in range(4):
            for h in range(2):
                r = WF + 16*ks + 4*q + 2*h
                k(f"ds_read_b64_tr_b16 v[{r}:{r+1}], v{12+q} offset:{ks*4096+h*2048}")
    st.stamp(False)
    k(f"""
    s_mov_b32 s40, 0
    s_mov_b64 exec, 0xffff
    L_fpoll:
    buffer_load_dwordx2 v[22:23], v20, s[24:27], s45 offen sc1
    s_add_u32 s40, s40, 1
    s_waitcnt vmcnt(0)
    v_cmp_ne_u64 vcc, s[46:47], v[22:23]
    s_cmp_gt_u32 s40, {SPIN}
    s_cbranch_scc1 L_fpoll_done
    s_nop 1
    s_cbranch_vccnz L_fpoll
    L_fpoll_done:
    s_mov_b64 exec, -1
    """)
    st.stamp(False)
    G = 32
    for ks in range(7):
        sb, off = (48, ks*1024) if ks < 4 else (50, (ks-4)*1024)
        k(f"buffer_load_dwordx4 v[{G+4*ks}:{G+4*ks+3}], v16, s[24:27], s{sb} offen offset:{off} sc1")
        k(f"buffer_load_dwordx4 v[{G+28+4*ks}:{G+28+4*ks+3}], v16, s[24:27], s{sb+1} offen offset:{off} sc1")
    A = 208
    k("s_mov_b32 s52, 0xffff0000")
    for ks in range(7):
        k(f"s_waitcnt vmcnt({12-2*ks})")
        for d in range(4):
            g = G+4*ks+d; u = G+28+4*ks+d
            k(f"v_and_b32 v{24+d}, 0xffff, v{u}\nv_and_b32 v{u}, s52, v{u}")
        for d in range(4):
            g = G+4*ks+d; u = G+28+4*ks+d
            k(f"v_dot2_f32_bf16 v{24+d}, v{g}, v{24+d}, 0\nv_dot2_f32_bf16 v{u}, v{g}, v{u}, 0")
        k("s_nop 0")
        for d in range(4):
            g = G+4*ks+d; u = G+28+4*ks+d
            k(f"v_cvt_pk_bf16_f32 v{g}, v{24+d}, v{u}")
        if ks == 0: k("s_waitcnt lgkmcnt(0)")
        k("s_nop 1")
        for q in range(4):
            c = "0" if ks == 0 else f"v[{A+4*q}:{A+4*q+3}]"
            k(f"v_mfma_f32_16x16x32_bf16 v[{A+4*q}:{A+4*q+3}], v[{WF+16*ks+4*q}:{WF+16*ks+4*q+3}], v[{G+4*ks}:{G+4*ks+3}], {c}")
    k(f"""
    s_lshl_b32 s3, s18, 11
    s_add_u32 s3, s3, {RED}
    v_add_u32 v20, s3, v16
    v_xor_b32 v21, 4096, v20
    s_lshl_b32 s3, s21, 2
    s_lshl_b32 s53, s22, 1
    s_add_u32 s3, s3, s53
    s_lshl_b32 s53, s20, 3
    s_add_u32 s3, s3, s53
    s_lshl_b32 s3, s3, 3
    s_add_u32 s3, s3, s19
    s_lshl_b32 s3, s3, 10
    s_add_u32 s53, s3, {P_OFF:#x}
    s_add_u32 s54, s53, 8192
    s_and_b32 s56, s46, 0xff
    s_bfe_u32 s57, s46, 0x80008
    s_bfe_u32 s58, s46, 0x80010
    s_lshr_b32 s59, s46, 24
    v_mov_b32 v22, 0xff
    """)
    st.stamp(False)
    k(f"""
    ds_write_b128 v20, v[{A+8}:{A+11}]
    ds_write_b128 v20, v[{A+12}:{A+15}] offset:1024
    s_waitcnt lgkmcnt(0)
    s_barrier
    ds_read_b128 v[24:27], v21
    ds_read_b128 v[28:31], v21 offset:1024
    s_waitcnt lgkmcnt(1)
    """)
    for d in range(4): k(f"v_add_f32 v{24+d}, v{24+d}, v{A+d}")
    for d in range(4): k(f"v_bfi_b32 v{24+d}, v22, s{56+d}, v{24+d}")
    k("buffer_store_dwordx4 v[24:27], v16, s[24:27], s53 offen sc1\ns_waitcnt lgkmcnt(0)")
    for d in range(4): k(f"v_add_f32 v{28+d}, v{28+d}, v{A+4+d}")
    for d in range(4): k(f"v_bfi_b32 v{28+d}, v22, s{56+d}, v{28+d}")
    k("buffer_store_dwordx4 v[28:31], v16, s[24:27], s54 offen sc1")
    st.stamp(False)
    k(f"""
    s_cmp_lg_u32 s18, 0
    s_cbranch_scc1 L_fin
    s_lshl_b32 s3, s20, 3
    s_add_u32 s3, s3, s19
    s_lshl_b32 s3, s3, 13
    s_add_u32 s53, s3, {P_OFF:#x}
    s_add_u32 s54, s53, 4096
    ; out offset: token = 32*mh2 + 16*(piece>>2) + l%16 ; col = 64*strip + 16*(piece&3) + 4g
    s_lshl_b32 s3, s41, 1
    s_lshr_b32 s55, s19, 2
    s_add_u32 s3, s3, s55
    s_lshl_b32 s3, s3, 15
    s_and_b32 s55, s20, 15
    s_lshl_b32 s55, s55, 7
    s_add_u32 s3, s3, s55
    s_and_b32 s55, s19, 3
    s_lshl_b32 s55, s55, 5
    s_add_u32 s55, s55, s3
    v_lshlrev_b32 v20, 11, v1
    v_lshl_add_u32 v20, v2, 3, v20
    s_mov_b32 s40, 0
    s_waitcnt vmcnt(0)
    """)
    st.stamp(False)
    k("L_rpoll:")
    for s in range(8):
        sb, off = (53, s*1024) if s < 4 else (54, (s-4)*1024)
        k(f"buffer_load_dwordx4 v[{32+4*s}:{35+4*s}], v16, s[24:27], s{sb} offen offset:{off} sc1")
    k("s_add_u32 s40, s40, 1\nv_mov_b32 v21, 0")
    for s in range(8):
        k(f"s_waitcnt vmcnt({7-s})")
        for d in range(4): k(f"v_xor_b32 v{32+4*s+d}, s{56+d}, v{32+4*s+d}")
        k(f"v_or3_b32 v21, v{32+4*s}, v{33+4*s}, v21\nv_or3_b32 v21, v{34+4*s}, v{35+4*s}, v21")
        if s:
            for d in range(4): k(f"v_add_f32 v{32+d}, v{32+d}, v{32+4*s+d}")
    k(f"""
    v_and_b32 v21, 0xff, v21
    v_cmp_ne_u32 vcc, 0, v21
    s_cmp_gt_u32 s40, {SPIN}
    s_cbranch_scc1 L_rdone
    s_nop 1
    s_cbranch_vccnz L_rpoll
    L_rdone:
    v_cvt_pk_bf16_f32 v32, v32, v33
    v_cvt_pk_bf16_f32 v33, v34, v35
    buffer_store_dwordx2 v[32:33], v20, s[32:35], s55 offen
    """)
    st.stamp(False)
    if stamps:
        k("s_waitcnt vmcnt(0)"); st.stamp(False)
    k("L_fin:")
    if stamps:
        k("s_mul_i32 s3, s2, 5\ns_add_u32 s3, s3, s18")
        st.flush(16, 3, 1, 24, extra=(40,))
    k("L_end:\ns_endpgm")
    open(fn, "w").write(emit([k], single=True))
    return fn

if __name__ == "__main__":
    gen("v1.s"); gen("v1_st.s", stamps=True)
```

```python
import sys
from asmlib import *
NAME = "standalone__swiglu_ffn__sampling_kernel"
WB = 1024*3584*2
H_OFF    = 0
P_OFF    = 0x100000
EP_OFF   = 0x300000
WS_USED  = 0x300100
WR = 0; XR = 131072; WD = 0; RED = 57344; LDS = 163840
SPIN = 100000
NC3 = [0,1,2,4,5,6,7,8,9,10,12,13,14,15]

def place(seq, lah):
    cost = {'W': 4, 'X': 1, 'D': 1}
    out = []; q = []; nb = 0
    def ready_age(s):
        idx = [n for n, t in enumerate(q) if t in (('W', s), ('X', s))]
        have = set(t for t in q if t in (('W', s), ('X', s)))
        return (len(q)-1-max(idx)) if len(have) == 2 else None
    for it in seq:
        need = -1
        if it[0] in 'WX' and it[1] >= 8: need = it[1]-6
        if it[0] == 'D': need = it[1]
        while nb < 16 and (nb <= need or (ready_age(nb) is not None and ready_age(nb)+cost[it[0]] > lah)):
            assert ready_age(nb) is not None, (it, nb)
            out.append(('B', nb)); nb += 1
        out.append(it); q += [it]*cost[it[0]]
    while nb < 16: out.append(('B', nb)); nb += 1
    return out

def gen(fn, stamps=False, opt=None):
    o = dict(xa=1, lah=13, nd1=6, dbar=15, copy='late', xpf='w', dbgat='tail', skip=0, slow=24, detail=False, plain=True, pre=True, fin='one', finwait=True)
    o.update(opt or {})
    k = Kernel(NAME, 256, 512, vgpr=256, sgpr=102, lds=LDS)
    st = Stamps(k, 64, on=stamps)
    st.stamp(False)
    k(f"""
    s_cmp_ge_u32 s2, 256
    s_cbranch_scc1 L_end
    s_load_dwordx8 s[4:11], s[0:1], 0
    s_load_dwordx4 s[12:15], s[0:1], 32
    s_load_dwordx2 s[16:17], s[0:1], 48
    v_lshrrev_b32 v1, 6, v0
    v_and_b32 v0, 63, v0
    s_and_b32 s19, s2, 7
    v_readfirstlane_b32 s18, v1        ; wave
    s_lshr_b32 s20, s2, 3
    s_cmp_lg_u32 s20, 17
    s_cbranch_scc1 L_nocode
    s_getpc_b64 s[56:57]
    L_pc:
    v_lshlrev_b32 v24, 7, v0
    v_lshl_add_u32 v24, v1, 13, v24
    v_min_u32 v24, L_tail-L_pc, v24
    s_cmp_gt_u32 s18, (L_tail-L_pc)/8192
    s_cbranch_scc1 L_nocode
    global_load_dword v25, v24, s[56:57]
    L_nocode:
    s_mov_b32 s31, 0x00020000
    s_mov_b32 s30, {WB:#x}
    s_and_b32 s47, s18, 3
    s_cmp_lt_u32 s18, 4
    s_cbranch_scc1 L_compute
    s_cmp_ge_u32 s20, 16
    s_cbranch_scc1 L_nothelper
    """)
    k(f"""
    v_mul_u32_u24 v5, 37, v0
    v_lshrrev_b32 v5, 8, v5            ; lane/7
    v_mul_u32_u24 v6, 7, v5
    v_sub_u32 v6, v0, v6               ; lane%7
    s_lshr_b32 s3, s20, 1
    s_lshl_b32 s3, s3, 3
    v_add_u32 v5, s3, v5
    v_mul_u32_u24 v5, 7168, v5
    v_lshl_add_u32 v5, v6, 7, v5
    s_mul_i32 s40, s19, 896
    s_mov_b32 exec_hi, 0x00ffffff
    s_bitcmp1_b32 s20, 0
    s_waitcnt lgkmcnt(0)
    s_cselect_b32 s28, s8, s6
    s_cselect_b32 s29, s9, s7
    s_and_b32 s29, s29, 0xffff
    """)
    st.stamp(False)
    k(f"""
    s_cmp_lg_u32 s47, 0
    s_cbranch_scc1 L_pfdone
    s_add_u32 s41, s40, {1024*7168}
    s_add_u32 s40, s40, {o['skip']*64*7168}
    L_pf:
    buffer_load_dword v8, v5, s[28:31], s40 offen
    s_add_u32 s40, s40, {64*7168}
    s_cmp_lt_u32 s40, s41
    s_cbranch_scc1 L_pf
    L_pfdone:
    """)
    k("s_mov_b64 exec, -1\ns_mov_b32 s23, s20\ns_mov_b32 s46, 0\ns_branch L_wdsetup")
    k("L_nothelper:")
    k("s_cmp_lt_u32 s20, 18\ns_cbranch_scc1 L_service")
    k(f"""
    s_sub_u32 s41, s20, 18             ; j
    v_lshrrev_b32 v1, 3, v0            ; r8 = l>>3
    v_and_b32 v2, 7, v0                ; q
    v_lshrrev_b32 v3, 4, v0            ; l>>4
    v_xor_b32 v4, v2, v3
    v_lshlrev_b32 v4, 4, v4
    v_lshl_add_u32 v8, v1, 11, v4
    s_and_b32 s3, s47, 1
    s_lshl_b32 s3, s3, 6
    v_xor_b32 v8, s3, v8
    s_lshl_b32 s42, s47, 14
    s_and_b32 s43, s41, 1              ; mh
    s_lshl_b32 s44, s43, 16
    s_add_u32 s3, s44, s42
    v_add_u32 v8, s3, v8
    v_and_b32 v9, 31, v0
    v_lshlrev_b32 v9, 11, v9
    v_lshrrev_b32 v4, 5, v0
    v_lshl_add_u32 v9, v4, 7, v9
    s_lshr_b32 s40, s41, 1             ; cg
    s_lshl_b32 s3, s40, 8
    s_add_u32 s3, s3, {2*128}
    s_add_u32 s44, s44, s3
    s_mul_i32 s3, s19, 7
    s_add_u32 s3, s3, s40
    s_lshl_b32 s3, s3, 7
    s_mul_i32 s48, s47, {2*57344}
    s_add_u32 s3, s3, s48
    v_and_b32 v4, 1, v3
    v_lshlrev_b32 v4, 5, v4
    v_lshlrev_b32 v5, 4, v2
    v_xor_b32 v4, v4, v5
    v_mul_u32_u24 v6, 7168, v1
    v_add3_u32 v12, v6, v4, s3
    v_xor_b32 v13, 64, v12
    v_add_u32 v13, {57344-1024}, v13
    s_lshl_b32 s50, s47, 11
    s_lshl_b32 s51, s47, 10
    s_mov_b32 s26, 0x20000
    s_mov_b32 s27, 0x00020000
    s_mov_b32 s38, {WB:#x}
    s_mov_b32 s39, 0x00020000
    s_waitcnt lgkmcnt(0)
    s_mov_b32 s24, s4
    s_and_b32 s25, s5, 0xffff
    s_mov_b32 s28, s6
    s_and_b32 s29, s7, 0xffff
    s_mov_b32 s36, s8
    s_and_b32 s37, s9, 0xffff
    """)
    st.n = 1; st.stamp(False)
    if o.get('xpf', 'w') == 'w':
        k("s_cmp_lg_u32 s47, 3\ns_cbranch_scc1 L_noxpf\nbuffer_load_dword v10, v9, s[24:27], s44 offen\nL_noxpf:")
    def wd_setup():
        k(f"""
        v_lshrrev_b32 v1, 3, v0
        v_and_b32 v2, 7, v0
        v_lshrrev_b32 v3, 4, v0
        v_lshlrev_b32 v4, 5, v3
        v_lshlrev_b32 v5, 4, v2
        v_xor_b32 v4, v4, v5
        v_lshl_add_u32 v20, v1, 11, v4
        s_mul_i32 s3, s19, {448*2048}
        s_lshl_b32 s52, s47, 14
        s_add_u32 s52, s52, s3
        s_lshl_b32 s3, s23, 7
        s_add_u32 s52, s52, s3
        v_add_u32 v20, s52, v20
        s_lshl_b32 s51, s47, 10
        """)
        srd(k, 32, 10, WB)
    def wd_group():
        k(f"""
        s_lshl_b32 s3, s46, 12
        s_add_u32 m0, s3, s51
        s_lshl_b32 s53, s46, 16
        buffer_load_dwordx4 v20, s[32:35], s53 offen lds
        s_add_u32 s46, s46, 1
        s_cmp_eq_u32 s46, 14
        s_cselect_b32 s46, 0, s46
        """)
    xa = o['xa']
    seq = [('X', s) for s in range(xa)]
    for s in range(16):
        seq.append(('W', s))
        if s+xa < 16: seq.append(('X', s+xa))
    seq += [('D', o['dbar'])]*o['nd1']
    prog = place(seq, o['lah'])
    q = []; dn = 0; first_b = True
    for it in prog:
        if it[0] == 'W':
            s = it[1]
            so = "0" if s == 0 else "s53"
            if s: k(f"s_mov_b32 s53, {s*64*7168}")
            k(f"""
            s_add_u32 m0, s50, {WR + (s & 7)*16384}
            s_nop 0
            buffer_load_dwordx4 v12, s[28:31], {so} offen lds
            buffer_load_dwordx4 v13, s[28:31], {so} offen offset:1024 lds
            s_add_u32 m0, s50, {WR + (s & 7)*16384 + 8192}
            s_nop 0
            buffer_load_dwordx4 v12, s[36:39], {so} offen lds
            buffer_load_dwordx4 v13, s[36:39], {so} offen offset:1024 lds
            """)
            q += [('W', s)]*4
        elif it[0] == 'X':
            s = it[1]
            k(f"""
            s_add_u32 m0, s51, {XR + (s & 7)*4096}
            s_movk_i32 s53, {s*128}
            buffer_load_dwordx4 v8, s[24:27], s53 offen lds
            """)
            q.append(('X', s))
        elif it[0] == 'D':
            wd_group(); q.append(('D',))
        elif it[0] == 'B':
            s = it[1]
            if first_b:
                first_b = False
                k("s_cmp_ge_u32 s41, 3\ns_addc_u32 s23, s41, 0\ns_cmp_ge_u32 s41, 10\ns_addc_u32 s23, s23, 0\ns_mov_b32 s46, 0")
                wd_setup()
            last = max(n for n, t in enumerate(q) if t in (('W', s), ('X', s)))
            k(f"s_waitcnt vmcnt({min(63, len(q)-1-last)})")
            if not (o.get('nobar') and s < 15): k("s_barrier")
            if stamps and o['detail'] and s in (0, 2, 4, 6, 8, 10, 12, 14):
                k(f"s_memrealtime s[{64+2*(5+dn)}:{65+2*(5+dn)}]"); dn += 1
            if s == 15 and stamps:
                st.n = 2; st.stamp(False); st.stamp(False)
    k("s_barrier")
    k(f"s_mov_b32 s55, {o['nd1']}\ns_branch L_wdp")
    k("L_service:")
    k(f"""
    s_and_b32 s3, s20, 1
    s_lshl_b32 s3, s3, 3
    s_add_u32 s23, s3, 3
    s_mov_b32 s46, 7
    s_waitcnt lgkmcnt(0)
    """)
    st.n = 1; st.stamp(False)
    if o.get('xpf', 'w') == 's':
        srd(k, 24, 4, 131072)
        k("""
        v_lshlrev_b32 v5, 11, v0
        s_and_b32 s3, s20, 1
        s_lshl_b32 s3, s3, 2
        s_add_u32 s3, s3, s47
        s_lshl_b32 s3, s3, 7
        buffer_load_dword v8, v5, s[24:27], s3 offen
        buffer_load_dword v8, v5, s[24:27], s3 offen offset:1024
        """)
    k("s_barrier")
    k("s_barrier")
    k("L_wdsetup:")
    wd_setup()
    if stamps: st.n = 2; st.stamp(False); st.stamp(False)
    k("s_mov_b32 s55, 0")
    k("s_cmp_ge_u32 s20, 16\ns_cbranch_scc1 L_wdp\ns_barrier")
    k("L_wdp:")
    wd_group()
    k("s_add_u32 s55, s55, 1\ns_cmp_lt_u32 s55, 14\ns_cbranch_scc1 L_wdp")
    k("s_cmp_lt_u32 s20, 18\ns_cbranch_scc1 L_nob2\ns_barrier\nL_nob2:")
    k("s_waitcnt vmcnt(0)")
    st.stamp(False)
    k("s_barrier")
    if stamps:
        if o['detail']: st.n = 13
        k("s_mul_i32 s3, s2, 8\ns_add_u32 s3, s3, s18")
        st.flush(16, 3, 1, 24)
    k("s_endpgm")

    k("L_compute:")
    st.n = 1
    k(f"""
    s_and_b32 s21, s18, 1              ; tb
    s_lshr_b32 s22, s18, 1
    v_and_b32 v1, 15, v0               ; l%16
    v_lshrrev_b32 v2, 4, v0            ; g
    v_lshrrev_b32 v3, 2, v1            ; r
    v_and_b32 v4, 3, v0                ; l%4
    v_lshlrev_b32 v16, 4, v0           ; lane*16
    v_lshlrev_b32 v17, 2, v0           ; lane*4
    s_mov_b32 s26, {WS_USED:#x}
    s_mov_b32 s27, 0x00020000
    s_mov_b32 s30, 256
    s_waitcnt lgkmcnt(0)
    s_mov_b32 s24, s16
    s_and_b32 s25, s17, 0xffff
    s_mov_b32 s28, s14
    s_and_b32 s29, s15, 0xffff
    """)
    k(f"""
    s_sub_u32 s3, s20, 16
    s_cmp_lt_u32 s3, 2
    s_cbranch_scc0 L_noclear
    s_lshl_b32 s40, s19, 1
    s_add_u32 s40, s40, s3
    s_lshl_b32 s41, s40, 2
    s_add_u32 s41, s41, s18
    s_mul_i32 s41, s41, 7168
    v_mov_b32 v18, 1
    v_mov_b32 v19, 0
    s_cmp_eq_u32 s2, 128
    s_cselect_b32 s42, s18, 1
    s_cmp_lg_u32 s42, 0
    s_cbranch_scc1 L_noepoch
    s_mov_b32 s3, {EP_OFF:#x}
    buffer_load_dword v18, v19, s[24:27], s3 offen sc1
    L_noepoch:
    v_mov_b32 v24, -1
    v_mov_b32 v25, -1
    v_mov_b32 v26, -1
    v_mov_b32 v27, -1
    s_add_u32 s43, s41, 4096
    """)
    for j in range(7 if not o.get('noclear') else 0):
        k(f"buffer_store_dwordx4 v[24:27], v16, s[24:27], s{41 if j < 4 else 43} offen offset:{(j & 3)*1024} sc1")
    k(f"""
    s_waitcnt vmcnt(0)
    s_barrier
    s_cmp_lg_u32 s18, 0
    s_cbranch_scc1 L_noflag
    s_mov_b64 exec, 1
    s_cmp_lg_u32 s42, 0
    s_cbranch_scc1 L_noep2
    v_add_u32 v18, 0x9e3779b2, v18
    v_or_b32 v18, 1, v18
    buffer_store_dword v18, v19, s[24:27], s3 offen sc1
    L_noep2:
    s_lshl_b32 s3, s40, 2
    v_mov_b32 v19, s3
    buffer_store_dword v18, v19, s[28:31], 0 offen sc1
    s_mov_b64 exec, -1
    L_noflag:
    """)
    if o['pre']:
        k(f"""
        v_lshlrev_b32 v20, 7, v0
        s_mov_b32 exec_hi, 0x00ffffff
        buffer_load_dword v21, v20, s[24:27], s41 offen sc1
        s_mov_b64 exec, -1
        """)
    k("s_barrier\nL_noclear:")
    k(f"""
    s_cmp_ge_u32 s20, 16
    s_cselect_b32 s41, 1, 0            ; mh2
    s_mov_b32 s23, s20
    s_cbranch_scc0 L_havestrip
    s_and_b32 s3, s20, 1
    s_lshl_b32 s3, s3, 3
    s_add_u32 s23, s3, 3
    s_cmp_lt_u32 s20, 18
    s_cbranch_scc1 L_havestrip
    s_sub_u32 s40, s20, 18
    s_cmp_ge_u32 s40, 3
    s_addc_u32 s23, s40, 0
    s_cmp_ge_u32 s40, 10
    s_addc_u32 s23, s23, 0
    L_havestrip:
    ; Wd read addresses v12..v15 (local q -> cb = q ^ 2kh): kh*28672 + (4g + r)*128 + ((cb ^ s)*32) + (l%4)*8 ; s = (2g + (r>>1))&3
    s_lshl_b32 s3, s22, 1
    v_lshl_add_u32 v5, v2, 2, v3
    v_lshrrev_b32 v6, 1, v5
    v_and_b32 v6, 3, v6
    v_xor_b32 v6, s3, v6
    v_lshlrev_b32 v5, 7, v5
    v_lshl_add_u32 v5, v4, 3, v5
    v_lshl_add_u32 v12, v6, 5, v5
    s_mul_i32 s3, s22, 28672
    v_add_u32 v12, s3, v12
    v_xor_b32 v13, 32, v12
    v_xor_b32 v14, 64, v12
    v_xor_b32 v15, 96, v12
    s_lshl_b32 s3, s19, 1
    s_add_u32 s3, s3, s41
    s_lshl_b32 s3, s3, 1
    s_add_u32 s3, s3, s21
    s_lshl_b32 s3, s3, 1
    s_add_u32 s3, s3, s22
    s_mul_i32 s48, s3, 7168
    s_add_u32 s49, s48, 4096
    s_lshl_b32 s3, s18, 11
    s_add_u32 s3, s3, {RED}
    v_add_u32 v232, s3, v16
    s_xor_b32 s42, s18, 2
    s_lshl_b32 s3, s42, 11
    s_add_u32 s3, s3, {RED}
    v_add_u32 v233, s3, v16
    v_mov_b32 v234, 0xff
    s_lshl_b32 s42, s41, 4
    s_add_u32 s42, s42, s23
    s_lshl_b32 s3, s21, 2
    s_lshl_b32 s53, s22, 1
    s_add_u32 s3, s3, s53
    s_lshl_b32 s53, s42, 3
    s_add_u32 s3, s3, s53
    s_lshl_b32 s3, s3, 3
    s_add_u32 s3, s3, s19
    s_lshl_b32 s3, s3, 10
    s_add_u32 s53, s3, {P_OFF:#x}
    s_add_u32 s54, s53, 8192
    s_lshl_b32 s3, s42, 3
    s_add_u32 s3, s3, s19
    s_lshl_b32 s3, s3, 13
    s_add_u32 s61, s3, {P_OFF:#x}
    s_add_u32 s62, s61, 4096
    ; out offset: token = 32*mh2 + 16*(piece>>2) + l%16 ; col = 64*strip + 16*(piece&3) + 4g
    s_lshl_b32 s3, s41, 1
    s_lshr_b32 s55, s19, 2
    s_add_u32 s3, s3, s55
    s_lshl_b32 s3, s3, 15
    s_lshl_b32 s55, s23, 7
    s_add_u32 s3, s3, s55
    s_and_b32 s55, s19, 3
    s_lshl_b32 s55, s55, 5
    s_add_u32 s55, s55, s3
    v_lshlrev_b32 v235, 11, v1
    v_lshl_add_u32 v235, v2, 3, v235
    s_mov_b32 s52, 0xffff0000
    s_lshl_b32 s3, s19, 1
    s_lshl_b32 s60, 3, s3
    s_or_b32 s60, s60, 1
    """)
    srd(k, 32, 12, 131072)
    st.stamp(False)
    def dbg_load(): k("s_mov_b64 exec, 0xffff\nbuffer_load_dword v18, v17, s[28:31], 0 offen sc1\ns_mov_b64 exec, -1")
    def dbg_wait(tag):
        k(f"""
        s_mov_b32 s40, 0
        L_dbg{tag}:
        s_waitcnt vmcnt(0)
        v_cmp_ne_u32 vcc, 0, v18
        v_readfirstlane_b32 s46, v18
        s_add_u32 s40, s40, 1
        s_and_b32 s3, vcc_lo, s60
        s_cmp_eq_u32 s3, s60
        s_cbranch_scc1 L_dbgok{tag}
        s_cmp_gt_u32 s40, {SPIN}
        s_cbranch_scc1 L_dbgok{tag}
        """)
        dbg_load()
        k(f"""
        s_branch L_dbg{tag}
        L_dbgok{tag}:
        s_and_b32 s56, s46, 0xff
        s_bfe_u32 s57, s46, 0x80008
        s_bfe_u32 s58, s46, 0x80010
        s_lshr_b32 s59, s46, 24
        """)
    k("s_cmp_lt_u32 s20, 18\ns_cbranch_scc1 L_ph1_skip")
    k(f"""
    ; x read addresses v8 (ks0), v9 (ks1):  token*128 + ((g ^ f)*16), token = 16tb + l%16, f = (token>>1)&7
    v_lshrrev_b32 v5, 1, v1
    v_xor_b32 v5, v5, v2
    v_lshlrev_b32 v5, 4, v5
    v_lshl_add_u32 v8, v1, 7, v5
    s_lshl_b32 s3, s21, 11
    s_add_u32 s3, s3, {XR}
    v_add_u32 v8, s3, v8
    v_xor_b32 v9, 64, v8
    ; W read addresses v10 (cb even), v11 (cb odd): (8g + r)*128 + ((cb ^ s)*32) + (l%4)*8 ; s = (r>>1) | (g&1)<<1
    v_lshl_add_u32 v5, v2, 3, v3
    v_lshlrev_b32 v5, 7, v5
    v_lshl_add_u32 v5, v4, 3, v5
    v_and_b32 v6, 1, v2
    v_lshlrev_b32 v6, 1, v6
    v_lshrrev_b32 v7, 1, v3
    v_or_b32 v6, v6, v7
    s_lshl_b32 s3, s22, 1
    v_xor_b32 v6, s3, v6
    v_lshl_add_u32 v10, v6, 5, v5
    v_xor_b32 v11, 32, v10
    s_sub_u32 s40, s20, 18
    s_and_b32 s3, s40, 1
    s_lshl_b32 s44, s19, 1
    s_add_u32 s44, s44, s3
    s_lshl_b32 s44, s44, 1
    s_add_u32 s44, s44, s21
    s_mul_i32 s44, s44, 14
    s_andn2_b32 s3, s40, 1
    s_add_u32 s44, s44, s3
    s_add_u32 s44, s44, s22
    s_lshl_b32 s44, s44, 10
    """)
    ACC = 24
    for r in range(16): k(f"v_mov_b32 v{ACC+r}, 0")
    def fr(p): return 40 + 20*p
    def reads(slot4, ks, p):
        b = fr(p)
        if o.get('noreads'): return
        k(f"ds_read_b128 v[{b}:{b+3}], v{8+ks} offset:{slot4*4096}")
        for m in range(2):
            for c in range(2):
                for h in range(2):
                    r = b + 4 + 8*m + 4*c + 2*h
                    k(f"ds_read_b64_tr_b16 v[{r}:{r+1}], v{10+c} offset:{slot4*16384+m*8192+ks*4096+h*512}")
    def mfmas(p):
        b = fr(p)
        if o.get('nomfma'): return
        for m in range(2):
            for c in range(2):
                a = ACC + 8*m + 4*c; w = b + 4 + 8*m + 4*c
                k(f"v_mfma_f32_16x16x32_bf16 v[{a}:{a+3}], v[{w}:{w+3}], v[{b}:{b+3}], v[{a}:{a+3}]")
    if o.get('nobar'): k("s_mov_b32 s40, 3\ns_barrier\ns_branch L_c1_end")
    k("s_mov_b32 s40, 0\ns_barrier")
    reads(0, 0, 0)
    k("s_branch L_c1_mid")
    k("L_c1:")
    for slot in range(4):
        k("s_barrier")
        if slot == 2 and o['dbgat'] == 'tail':
            k("s_cmp_lg_u32 s40, 3\ns_cbranch_scc1 L_nodbg2")
            dbg_load()
            k("L_nodbg2:")
        reads(slot, 0, 0)
        k("s_waitcnt lgkmcnt(9)")
        mfmas(1)
        if slot == 0: k("L_c1_mid:")
        reads(slot, 1, 1)
        k("s_waitcnt lgkmcnt(9)")
        mfmas(0)
    k(f"""
    v_xor_b32 v8, 0x4000, v8
    v_xor_b32 v9, 0x4000, v9
    v_xor_b32 v10, 0x10000, v10
    v_xor_b32 v11, 0x10000, v11
    s_add_u32 s40, s40, 1
    s_cmp_lg_u32 s40, {2 if o['dbgat'] == 'mid' else 7}
    s_cbranch_scc1 L_nodbg
    """)
    k("L_c1_end:")
    dbg_load()
    if o.get('nobar'): k("s_mov_b32 s40, 4")
    k(f"""
    L_nodbg:
    s_cmp_lt_u32 s40, 4
    s_cbranch_scc1 L_c1
    s_waitcnt lgkmcnt(0)
    """)
    mfmas(1)
    st.stamp(False)
    dbg_wait("W")
    T = 40
    for p in range(4): k(f"v_cvt_pk_bf16_f32 v{T+p}, v{ACC+2*p}, v{ACC+1+2*p}")
    for p in range(4): k(f"v_lshlrev_b32 v{ACC+2*p}, 16, v{T+p}\nv_and_b32 v{ACC+1+2*p}, s52, v{T+p}")
    k("s_mov_b32 s3, 0xbfb8aa3b")
    for e in range(8): k(f"v_mul_f32 v{T+e}, s3, v{ACC+e}")
    for e in range(8): k(f"v_exp_f32 v{T+e}, v{T+e}")
    for p in range(4): k(f"v_cvt_pk_bf16_f32 v{T+8+p}, v{ACC+8+2*p}, v{ACC+9+2*p}")
    for e in range(8): k(f"v_add_f32 v{T+e}, 1.0, v{T+e}")
    for e in range(8): k(f"v_rcp_f32 v{T+e}, v{T+e}")
    for p in range(4): k(f"v_and_b32 v{ACC+8+2*p}, 0xffff, v{T+8+p}\nv_and_b32 v{ACC+9+2*p}, s52, v{T+8+p}")
    for e in range(8): k(f"v_mul_f32 v{ACC+e}, v{ACC+e}, v{T+e}")
    for p in range(4): k(f"v_cvt_pk_bf16_f32 v{T+p}, v{ACC+2*p}, v{ACC+1+2*p}")
    for e in range(8): k(f"v_dot2_f32_bf16 v{ACC+e}, v{T+e//2}, v{ACC+8+e}, 0")
    R = 228
    k("s_nop 0")
    for p in range(4): k(f"v_cvt_pk_bf16_f32 v{R+p}, v{ACC+2*p}, v{ACC+1+2*p}")
    for p in range(4): k(f"v_min_u32 v{R+p}, -2, v{R+p}")
    fl = "" if o['plain'] else "sc1"
    k(f"buffer_store_dwordx4 v[{R}:{R+3}], v16, s[24:27], s44 offen {fl}")
    k("s_barrier")
    st.stamp(False)
    k("s_barrier")
    G = 32
    def hload(ks):
        sb, off = (48, ks*1024) if ks < 4 else (49, (ks-4)*1024)
        k(f"buffer_load_dwordx4 v[{G+4*ks}:{G+4*ks+3}], v16, s[24:27], s{sb} offen offset:{off} sc1")
    for ks in range(7): hload(ks)
    extra = 1 if o['copy'] == 'early' else 0
    if extra: k(f"buffer_store_dwordx4 v[{R}:{R+3}], v16, s[24:27], s44 offen sc1")
    k("s_barrier\ns_branch L_ph2")
    k("L_ph1_skip:")
    k("s_cmp_ge_u32 s20, 16\ns_cbranch_scc1 L_nob3\ns_barrier\nL_nob3:")
    if not o.get('dbglate'):
        dbg_load()
        dbg_wait("H")
    if stamps: st.n = 2; st.stamp(False); st.stamp(False)
    k("s_barrier")
    if o.get('dbglate'):
        dbg_load()
        dbg_wait("H")
    for ks in range(7): hload(ks)
    if extra: k("s_mov_b64 exec, 1\nbuffer_load_dword v18, v17, s[28:31], 0 offen sc1\ns_mov_b64 exec, -1")
    k("L_ph2:")
    st.stamp(False)
    WF = 96
    A = 208
    def wdreads(ks):
        out = []
        for q in (2, 3, 0, 1):
            for h in range(2):
                r = WF + 16*ks + 4*q + 2*h
                out.append(f"ds_read_b64_tr_b16 v[{r}:{r+1}], v{12+q} offset:{ks*4096+h*2048}")
        return out
    def check(ks):
        g = G+4*ks
        return [f"s_waitcnt vmcnt({6-ks+extra})", f"v_max3_u32 v24, v{g}, v{g+1}, v{g+2}", f"v_max_u32 v24, v24, v{g+3}", "v_cmp_eq_u32 vcc, -1, v24"]
    if stamps: k("s_waitcnt lgkmcnt(0)")
    npre = o.get('npre', 3)
    for ks in range(npre):
        for l in wdreads(ks): k(l)
    k("s_mov_b32 s40, 0")
    for l in check(0): k(l)
    k("s_nop 1")
    for ks in range(7):
        g = G+4*ks
        rd = wdreads(ks+npre) if ks+npre < 7 else []
        ck = check(ks+1) if ks < 6 else []
        nout = 8*(min(7, ks+npre)-ks-1)
        k(f"L_h{ks}:\ns_cbranch_vccnz L_hf{ks}\nL_hgo{ks}:\ns_waitcnt lgkmcnt({min(14, nout)})")
        for n, q in enumerate((2, 3, 0, 1)):
            c = "0" if ks == 0 else f"v[{A+4*q}:{A+4*q+3}]"
            k(f"v_mfma_f32_16x16x32_bf16 v[{A+4*q}:{A+4*q+3}], v[{WF+16*ks+4*q}:{WF+16*ks+4*q+3}], v[{g}:{g+3}], {c}")
            for l in rd[2*n:2*n+2]: k(l)
            if n == 0 and ck: k(ck[0]); k(ck[1])
            if n == 1 and ck: k(ck[2])
            if n == 2 and ck: k(ck[3])
    st.n += 1
    if stamps: k("s_mov_b32 s98, s40")
    st.stamp(False)
    k(f"""
    s_nop 4
    ds_write_b128 v232, v[{A+8}:{A+11}]
    s_nop 0
    ds_write_b128 v232, v[{A+12}:{A+15}] offset:1024
    s_waitcnt lgkmcnt(0)
    s_barrier
    ds_read_b128 v[24:27], v233
    ds_read_b128 v[28:31], v233 offset:1024
    s_waitcnt lgkmcnt(1)
    """)
    for d in range(4): k(f"v_add_f32 v{24+d}, v{24+d}, v{A+d}")
    for d in range(4): k(f"v_bfi_b32 v{24+d}, v234, s{56+d}, v{24+d}")
    k("buffer_store_dwordx4 v[24:27], v16, s[24:27], s53 offen sc1\ns_waitcnt lgkmcnt(0)")
    for d in range(4): k(f"v_add_f32 v{28+d}, v{28+d}, v{A+4+d}")
    for d in range(4): k(f"v_bfi_b32 v{28+d}, v234, s{56+d}, v{28+d}")
    k("buffer_store_dwordx4 v[28:31], v16, s[24:27], s54 offen sc1")
    if o['plain'] and o['copy'] == 'late':
        k(f"""
        s_cmp_lt_u32 s20, 18
        s_cbranch_scc1 L_nocopy
        buffer_store_dwordx4 v[{R}:{R+3}], v16, s[24:27], s44 offen sc1
        L_nocopy:
        """)
    st.stamp(False)
    k(f"""
    s_cmp_lg_u32 s18, 0
    s_cbranch_scc1 L_exit
    s_mov_b32 s40, 0
    """)
    if o['finwait']: k("s_waitcnt vmcnt(0)")
    st.stamp(False)
    k("L_rpoll:")
    for s in range(8):
        sb, off = (61, s*1024) if s < 4 else (62, (s-4)*1024)
        k(f"buffer_load_dwordx4 v[{32+4*s}:{35+4*s}], v16, s[24:27], s{sb} offen offset:{off} sc1")
    k("s_add_u32 s40, s40, 1\nv_mov_b32 v21, 0")
    for s in range(8):
        k(f"s_waitcnt vmcnt({7-s})")
        for d in range(4): k(f"v_xor_b32 v{32+4*s+d}, s{56+d}, v{32+4*s+d}")
        k(f"v_or3_b32 v21, v{32+4*s}, v{33+4*s}, v21\nv_or3_b32 v21, v{34+4*s}, v{35+4*s}, v21")
        if s:
            for d in range(4): k(f"v_add_f32 v{32+d}, v{32+d}, v{32+4*s+d}")
    k(f"""
    v_and_b32 v21, 0xff, v21
    v_cmp_ne_u32 vcc, 0, v21
    s_cmp_gt_u32 s40, {SPIN}
    s_cbranch_scc1 L_rdone
    s_nop 0
    s_cbranch_vccnz L_rpoll
    L_rdone:
    v_cvt_pk_bf16_f32 v32, v32, v33
    v_cvt_pk_bf16_f32 v33, v34, v35
    buffer_store_dwordx2 v[32:33], v235, s[32:35], s55 offen
    """)
    st.stamp(False)
    if stamps:
        k("s_waitcnt vmcnt(0)"); st.stamp(False)
    k("L_exit:")
    if stamps:
        k("s_mul_i32 s3, s2, 8\ns_add_u32 s3, s3, s18")
        st.flush(16, 3, 1, 24, extra=(40,98))
    k("L_end:\ns_endpgm")
    for ks in range(7):
        k(f"""
        L_hf{ks}:
        s_add_u32 s40, s40, 1
        s_cmp_gt_u32 s40, {SPIN}
        s_cbranch_scc1 L_hgo{ks}
        s_waitcnt vmcnt(0)
        s_cmp_lt_u32 s40, {o['slow']}
        s_cbranch_scc1 L_hr{ks}
        s_and_b32 s3, s40, 3
        s_cmp_lg_u32 s3, 0
        s_cbranch_scc1 L_hr{ks}
        buffer_wbl2 sc1
        s_waitcnt vmcnt(0)
        buffer_inv sc1
        s_waitcnt vmcnt(0)
        L_hr{ks}:
        """)
        for j in range(ks, 7): hload(j)
        k(f"s_waitcnt vmcnt({6-ks})")
        for l in check(ks)[1:]: k(l)
        k(f"s_nop 1\ns_cbranch_vccnz L_hf{ks}")
        if extra: k("s_waitcnt vmcnt(0)")
        k(f"s_branch L_hgo{ks}")
    k("L_tail:\ns_endpgm")
    open(fn, "w").write(emit([k], single=True))
    return fn

if __name__ == "__main__":
    import itertools
    gen("v6.s")
    fs = []
    b=dict(detail=True, copy='none')
    fs.append(gen("v6_base.s", stamps=True, opt=b))
    for nm,d in (("skip1",dict(skip=1)),("skip2",dict(skip=2)),("nopre",dict(pre=False)),("xa2",dict(xa=2)),("xa3",dict(xa=3)),
                 ("l10",dict(lah=10)),("l15",dict(lah=15)),("nd9",dict(nd1=9)),("nd3",dict(nd1=3)),("dl",dict(dbglate=True)),("np7",dict(npre=7)),
                 ("noclr",dict(noclear=True,pre=False)),("late",dict(copy='late')),("early",dict(copy='early'))):
        fs.append(gen(f"v6_{nm}.s", stamps=True, opt=dict(b, **d)))
    print(" ".join(fs))
```

```python
import sys
from asmlib import *
NAME = "standalone__swiglu_ffn__sampling_kernel"
WB = 1024*3584*2
H_OFF    = 0
C_OFF    = 0x80000
A_OFF    = 0xa0000
P_OFF    = 0x100000
EP_OFF   = 0x300000
WS_USED  = 0x300100
WR = 0; XR = 131072; WD = 0; RED = 57344; LDS = 163840
SPIN = 100000
CS = [11,12,13,14,15,50,51]
NC3 = [0,1,2,4,5,6,7,8,9,10,12,13,14,15]

def place(seq, lah):
    cost = {'W': 4, 'X': 1, 'D': 1}
    out = []; q = []; nb = 0
    def ready_age(s):
        idx = [n for n, t in enumerate(q) if t in (('W', s), ('X', s))]
        have = set(t for t in q if t in (('W', s), ('X', s)))
        return (len(q)-1-max(idx)) if len(have) == 2 else None
    for it in seq:
        need = -1
        if it[0] in 'WX' and it[1] >= 8: need = it[1]-6
        if it[0] == 'D': need = it[1]
        while nb < 16 and (nb <= need or (ready_age(nb) is not None and ready_age(nb)+cost[it[0]] > lah)):
            assert ready_age(nb) is not None, (it, nb)
            out.append(('B', nb)); nb += 1
        out.append(it); q += [it]*cost[it[0]]
    while nb < 16: out.append(('B', nb)); nb += 1
    return out

def gen(fn, stamps=False, opt=None):
    o = dict(xa=3, lah=13, nd1=14, nb4=3, dbar=15, copy='ack', outfl='', pk=True, pub=1, rotk=True, outpre=False, dplan=[14]*4+[15]*10, xpf='w', dbgat='tail', skip=0, slow=24, detail=False, plain=True, pre=True, fin='one', finwait=0)
    o.update(opt or {})
    k = Kernel(NAME, 256, 512, vgpr=256, sgpr=102, lds=LDS)
    st = Stamps(k, 64, on=stamps)
    st.stamp(False)
    k(f"""
    s_cmp_ge_u32 s2, 256
    s_cbranch_scc1 L_end
    s_load_dwordx8 s[4:11], s[0:1], 0
    s_load_dwordx4 s[12:15], s[0:1], 32
    s_load_dwordx2 s[16:17], s[0:1], 48
    v_lshrrev_b32 v1, 6, v0
    v_and_b32 v0, 63, v0
    s_and_b32 s19, s2, 7               ; group (one die under round-robin placement; speed only)
    v_readfirstlane_b32 s18, v1        ; wave
    s_lshr_b32 s20, s2, 3
    s_cmp_lg_u32 s20, 17
    s_cbranch_scc1 L_nocode
    s_getpc_b64 s[56:57]
    L_pc:
    v_lshlrev_b32 v24, 7, v0
    v_lshl_add_u32 v24, v1, 13, v24
    v_min_u32 v24, L_tail-L_pc, v24
    s_cmp_gt_u32 s18, (L_tail-L_pc)/8192
    s_cbranch_scc1 L_nocode
    global_load_dword v25, v24, s[56:57]
    L_nocode:
    s_mov_b32 s31, 0x00020000
    s_mov_b32 s30, {WB:#x}
    s_and_b32 s47, s18, 3
    s_cmp_lt_u32 s18, 4
    s_cbranch_scc1 L_compute
    s_cmp_ge_u32 s20, 18
    s_cbranch_scc1 L_nothelper
    """)
    XH = ""
    if o['xpf'] == 'h':
        XH = """s_cmp_ge_u32 s20, 16
        s_cbranch_scc1 L_noxh
        s_mov_b32 s24, s4
        s_and_b32 s25, s5, 0xffff
        s_mov_b32 s26, 0x20000
        s_mov_b32 s27, 0x00020000
        s_mov_b64 exec, -1
        v_lshlrev_b32 v9, 11, v0
        s_lshl_b32 s3, s20, 7
        buffer_load_dword v8, v9, s[24:27], s3 offen
        s_mov_b32 exec_hi, 0x00ffffff
        L_noxh:"""
    k(f"""
    v_mul_u32_u24 v5, 37, v0
    v_lshrrev_b32 v5, 8, v5            ; lane/7
    v_mul_u32_u24 v6, 7, v5
    v_sub_u32 v6, v0, v6               ; lane%7
    s_lshr_b32 s3, s20, 1
    s_lshl_b32 s3, s3, 3
    v_add_u32 v5, s3, v5
    v_mul_u32_u24 v5, 7168, v5
    v_lshl_add_u32 v5, v6, 7, v5
    s_mul_i32 s40, s19, 896
    s_memrealtime s[58:59]
    s_mov_b32 exec_hi, 0x00ffffff
    s_bitcmp1_b32 s20, 0
    s_waitcnt lgkmcnt(0)
    s_cselect_b32 s28, s8, s6
    s_cselect_b32 s29, s9, s7
    s_and_b32 s29, s29, 0xffff
    """)
    st.stamp(False)
    k(f"""
    s_cmp_lg_u32 s47, 0
    s_cbranch_scc1 L_pfskip
    s_cmp_lg_u32 s2, {o['pub']}
    s_cbranch_scc1 L_nopub
    s_lshl_b32 s3, s58, 1
    s_or_b32 s3, s3, 1
    s_mul_i32 s3, s3, 0x9e3779b1
    s_mov_b32 s36, s14
    s_and_b32 s37, s15, 0xffff
    s_movk_i32 s38, 256
    s_mov_b32 s39, 0x00020000
    v_mov_b32 v9, s3
    v_mov_b32 v10, 0
    s_mov_b64 exec, 1
    buffer_store_dword v9, v10, s[36:39], 0 offen sc1
    s_mov_b32 exec_lo, -1
    s_mov_b32 exec_hi, 0x00ffffff
    L_nopub:
    {XH}
    s_add_u32 s41, s40, {1024*7168}
    L_pf:
    buffer_load_dword v8, v5, s[28:31], s40 offen
    s_add_u32 s40, s40, {9*8*7168}
    s_cmp_lt_u32 s40, s41
    s_cbranch_scc1 L_pf
    L_pfskip:
    """)
    k("""
    s_mov_b64 exec, -1
    s_mov_b32 s23, s20
    s_mov_b32 s46, 0
    s_cmp_lt_u32 s20, 16
    s_cbranch_scc1 L_wdsetup
    s_and_b32 s3, s20, 1
    s_lshl_b32 s3, s3, 3
    s_add_u32 s23, s3, 3
    s_mov_b32 s46, 10
    s_branch L_wdsetup
    """)
    k("L_nothelper:")
    k(f"""
    s_sub_u32 s41, s20, 18             ; j
    v_lshrrev_b32 v1, 3, v0            ; r8 = l>>3
    v_and_b32 v2, 7, v0                ; q
    v_lshrrev_b32 v3, 4, v0            ; l>>4
    v_xor_b32 v4, v2, v3
    v_lshlrev_b32 v4, 4, v4
    v_lshl_add_u32 v8, v1, 11, v4
    s_and_b32 s3, s47, 1
    s_lshl_b32 s3, s3, 6
    v_xor_b32 v8, s3, v8
    s_lshl_b32 s42, s47, 14
    s_and_b32 s43, s41, 1              ; mh
    s_lshl_b32 s44, s43, 16
    s_add_u32 s3, s44, s42
    v_add_u32 v8, s3, v8
    v_and_b32 v9, 31, v0
    v_lshlrev_b32 v9, 11, v9
    v_lshrrev_b32 v4, 5, v0
    v_lshl_add_u32 v9, v4, 7, v9
    s_lshr_b32 s40, s41, 1             ; cg
    s_lshl_b32 s3, s40, 8
    s_add_u32 s3, s3, {2*128}
    s_add_u32 s44, s44, s3
    s_mul_i32 s3, s19, 7
    s_add_u32 s3, s3, s40
    s_lshl_b32 s3, s3, 7
    s_mul_i32 s48, s47, {2*57344}
    s_add_u32 s3, s3, s48
    v_and_b32 v4, 1, v3
    v_lshlrev_b32 v4, 5, v4
    v_lshlrev_b32 v5, 4, v2
    v_xor_b32 v4, v4, v5
    v_mul_u32_u24 v6, 7168, v1
    v_add3_u32 v12, v6, v4, s3
    v_xor_b32 v13, 64, v12
    v_add_u32 v13, {57344-1024}, v13
    s_lshl_b32 s50, s47, 11
    s_lshl_b32 s51, s47, 10
    s_mov_b32 s26, 0x20000
    s_mov_b32 s27, 0x00020000
    s_mov_b32 s38, {WB:#x}
    s_mov_b32 s39, 0x00020000
    s_waitcnt lgkmcnt(0)
    s_mov_b32 s24, s4
    s_and_b32 s25, s5, 0xffff
    s_mov_b32 s28, s6
    s_and_b32 s29, s7, 0xffff
    s_mov_b32 s36, s8
    s_and_b32 s37, s9, 0xffff
    """)
    st.n = 1; st.stamp(False)
    if o.get('wdelay0'): k(f"s_sleep {o['wdelay0']}")
    if o.get('xpf', 'w') == 'w':
        k("s_cmp_lg_u32 s47, 3\ns_cbranch_scc1 L_noxpf\nbuffer_load_dword v10, v9, s[24:27], s44 offen\nL_noxpf:")
    def rot_r(d):
        k(f"s_cmp_ge_u32 s23, 14\ns_cselect_b32 s{d}, 14, 0\ns_cbranch_scc1 L_r{rc[0]}\ns_cmp_ge_u32 s23, 7\ns_cselect_b32 s{d}, 7, 0\nL_r{rc[0]}:\ns_sub_u32 s{d}, s23, s{d}")
        rc[0] += 1
    rc = [0]
    def wd_setup():
        k(f"""
        v_lshrrev_b32 v1, 3, v0
        v_and_b32 v2, 7, v0
        v_lshrrev_b32 v3, 4, v0
        v_lshlrev_b32 v4, 5, v3
        v_lshlrev_b32 v5, 4, v2
        v_xor_b32 v4, v4, v5
        v_lshl_add_u32 v20, v1, 11, v4
        s_mul_i32 s3, s19, {448*2048}
        s_lshl_b32 s52, s47, 14
        s_add_u32 s52, s52, s3
        s_lshl_b32 s3, s23, 7
        s_add_u32 s52, s52, s3
        v_add_u32 v20, s52, v20
        s_lshl_b32 s51, s47, 10
        """)
        srd(k, 32, 10, WB)
        if o['rotk']:
            k(f"v_add_u32 v21, {7*65536}, v20")
            rot_r(3)
            for j in range(7):
                k(f"s_lshl_b32 s{4+j}, s3, 16")
                if j < 6: k("s_add_u32 s3, s3, 1\ns_cmp_eq_u32 s3, 7\ns_cselect_b32 s3, 0, s3")
    def wd_group():
        k(f"""
        s_lshl_b32 s3, s46, 12
        s_add_u32 m0, s3, s51
        s_lshl_b32 s53, s46, 16
        buffer_load_dwordx4 v20, s[32:35], s53 offen lds
        s_add_u32 s46, s46, 7              ; order 0,7,1,8,...,6,13,0,...
        s_cmp_ge_u32 s46, 14
        s_cselect_b32 s3, 13, 0
        s_sub_u32 s46, s46, s3
        s_cmp_eq_u32 s46, 7
        s_cselect_b32 s3, s3, 0
        s_cmp_lg_u32 s3, 0
        s_cselect_b32 s46, 0, s46
        """)
    if o.get('wdelay'): k(f"s_sleep {o['wdelay']}")
    ndn = [0]
    def wd_imm(g):
        gg = (g >> 1) + 7*(g & 1)
        if o['rotk']:
            so = f"s{4+(g >> 1)}"
            k(f"s_add_u32 m0, s51, {gg*4096}\ns_nop 0\nbuffer_load_dwordx4 v{20+(g & 1)}, s[32:35], {so} offen lds")
        else:
            k(f"s_add_u32 m0, s51, {gg*4096}\ns_mov_b32 s53, {gg*65536}\nbuffer_load_dwordx4 v20, s[32:35], s53 offen lds")
    xa = o['xa']
    seq = [('X', s) for s in range(xa)]
    for s in range(16):
        seq.append(('W', s))
        if s+xa < 16: seq.append(('X', s+xa))
    dpl = (o.get('dplan') if len(o.get('dplan') or []) == o['nd1'] else None) or [o['dbar']]*o['nd1']
    assert len(dpl) == o['nd1']
    seq += [('D', b) for b in dpl]
    prog = place(seq, o['lah'])
    q = []; dn = 0; first_b = True
    for it in prog:
        if it[0] == 'W':
            s = it[1]
            so = "0" if s == 0 else "s53"
            if s: k(f"s_mov_b32 s53, {s*64*7168}")
            k(f"""
            s_add_u32 m0, s50, {WR + (s & 7)*16384}
            s_nop 0
            buffer_load_dwordx4 v12, s[28:31], {so} offen lds
            buffer_load_dwordx4 v13, s[28:31], {so} offen offset:1024 lds
            s_add_u32 m0, s50, {WR + (s & 7)*16384 + 8192}
            s_nop 0
            buffer_load_dwordx4 v12, s[36:39], {so} offen lds
            buffer_load_dwordx4 v13, s[36:39], {so} offen offset:1024 lds
            """)
            q += [('W', s)]*4
        elif it[0] == 'X':
            s = it[1]
            k(f"""
            s_add_u32 m0, s51, {XR + (s & 7)*4096}
            s_movk_i32 s53, {s*128}
            buffer_load_dwordx4 v8, s[24:27], s53 offen lds
            """)
            q.append(('X', s))
        elif it[0] == 'D':
            wd_imm(ndn[0]); ndn[0] += 1; q.append(('D',))
        elif it[0] == 'B':
            s = it[1]
            if first_b:
                first_b = False
                k("s_cmp_ge_u32 s41, 3\ns_addc_u32 s23, s41, 0\ns_cmp_ge_u32 s41, 10\ns_addc_u32 s23, s23, 0\ns_mov_b32 s46, 0")
                wd_setup()
            last = max(n for n, t in enumerate(q) if t in (('W', s), ('X', s)))
            k(f"s_waitcnt vmcnt({min(63, len(q)-1-last)})")
            if not (o.get('nobar') and s < 15): k("s_barrier")
            if stamps and o['detail'] and s in (0, 2, 4, 6, 8, 10, 12, 14):
                k(f"s_memrealtime s[{64+2*(5+dn)}:{65+2*(5+dn)}]"); dn += 1
            if s == 15 and stamps:
                st.n = 2; st.stamp(False); st.stamp(False)
    k("s_waitcnt vmcnt(0)\ns_barrier")
    if o['nd1'] < 14:
        for g in range(o['nd1'], 14): wd_imm(g)
        k("s_barrier")
        k("s_branch L_wdw")
    else:
        if stamps: st.n = 4; st.stamp(False)
        k("s_branch L_ldexit")
    k("L_wdsetup:")
    wd_setup()
    if stamps: st.n = 2; st.stamp(False); st.stamp(False)
    k("s_barrier")
    k("s_cmp_ge_u32 s20, 16\ns_cbranch_scc1 L_wd2")
    k("L_wd1:")
    for g in range(7): wd_imm(g)
    k("s_cmp_ge_u32 s20, 16\ns_cbranch_scc1 L_wdw")
    k("L_wd2:")
    for g in range(7, 14): wd_imm(g)
    k("s_cmp_ge_u32 s20, 16\ns_cbranch_scc1 L_wd1")
    k("L_wdw:")
    k("s_waitcnt vmcnt(0)")
    st.stamp(False)
    k("s_barrier")
    k("L_ldexit:")
    if stamps:
        if o['detail']: st.n = 13
        k("s_mul_i32 s3, s2, 8\ns_add_u32 s3, s3, s18")
        st.flush(16, 3, 1, 24)
    k("s_endpgm")

    k("L_compute:")
    st.n = 1
    k(f"""
    s_and_b32 s21, s18, 1              ; tb
    s_lshr_b32 s22, s18, 1
    v_and_b32 v1, 15, v0               ; l%16
    v_lshrrev_b32 v2, 4, v0            ; g
    v_lshrrev_b32 v3, 2, v1            ; r
    v_and_b32 v4, 3, v0                ; l%4
    v_lshlrev_b32 v16, 4, v0           ; lane*16
    v_lshlrev_b32 v17, 2, v0           ; lane*4
    s_mov_b32 s26, {WS_USED:#x}
    s_mov_b32 s27, 0x00020000
    s_mov_b32 s30, 256
    s_waitcnt lgkmcnt(0)
    s_mov_b32 s24, s16
    s_and_b32 s25, s17, 0xffff
    s_mov_b32 s28, s14
    s_and_b32 s29, s15, 0xffff
    """)
    k(f"""
    s_cmp_ge_u32 s20, 16
    s_cselect_b32 s41, 1, 0            ; mh2
    s_mov_b32 s23, s20
    s_cbranch_scc0 L_havestrip
    s_and_b32 s3, s20, 1
    s_lshl_b32 s3, s3, 3
    s_add_u32 s23, s3, 3
    s_cmp_lt_u32 s20, 18
    s_cbranch_scc1 L_havestrip
    s_sub_u32 s40, s20, 18
    s_cmp_ge_u32 s40, 3
    s_addc_u32 s23, s40, 0
    s_cmp_ge_u32 s40, 10
    s_addc_u32 s23, s23, 0
    L_havestrip:
    ; Wd read addresses v12..v15 (local q -> cb = q ^ 2kh): kh*28672 + (4g + r)*128 + ((cb ^ s)*32) + (l%4)*8 ; s = (2g + (r>>1))&3
    s_lshl_b32 s3, s22, 1
    v_lshl_add_u32 v5, v2, 2, v3
    v_lshrrev_b32 v6, 1, v5
    v_and_b32 v6, 3, v6
    v_xor_b32 v6, s3, v6
    v_lshlrev_b32 v5, 7, v5
    v_lshl_add_u32 v5, v4, 3, v5
    v_lshl_add_u32 v12, v6, 5, v5
    s_mul_i32 s3, s22, 28672
    v_add_u32 v12, s3, v12
    v_xor_b32 v13, 32, v12
    v_xor_b32 v14, 64, v12
    v_xor_b32 v15, 96, v12
    s_lshl_b32 s3, s19, 1
    s_add_u32 s3, s3, s41
    s_lshl_b32 s3, s3, 1
    s_add_u32 s3, s3, s21
    s_lshl_b32 s3, s3, 1
    s_add_u32 s3, s3, s22
    s_mul_i32 s48, s3, 7168
    s_add_u32 s49, s48, 4096
    s_lshl_b32 s3, s18, 11
    s_add_u32 s3, s3, {RED}
    v_add_u32 v232, s3, v16
    s_xor_b32 s42, s18, 2
    s_lshl_b32 s3, s42, 11
    s_add_u32 s3, s3, {RED}
    v_add_u32 v233, s3, v16
    v_mov_b32 v234, 0xff
    ; tile = mh2*16 + strip ; a piece is 4 tokens x 64 columns: piece = tb*4 + (l%16)/4 ; record = [cb][g][token&3] x 16 B
    s_lshl_b32 s42, s41, 4
    s_add_u32 s42, s42, s23
    s_lshl_b32 s3, s42, 1
    s_add_u32 s3, s3, s21
    s_lshl_b32 s3, s3, 5
    s_add_u32 s3, s3, s19
    s_lshl_b32 s3, s3, 1
    s_add_u32 s3, s3, s22
    s_lshl_b32 s3, s3, 9
    s_add_u32 s53, s3, {P_OFF:#x}
    v_lshlrev_b32 v237, 13, v3
    v_lshl_add_u32 v237, v2, 6, v237
    v_lshl_add_u32 v237, v4, 4, v237
    ; final reduce: same tile, piece = xcd
    s_lshl_b32 s3, s42, 3
    s_add_u32 s3, s3, s19
    s_lshl_b32 s3, s3, 13
    s_add_u32 s61, s3, {P_OFF:#x}
    s_add_u32 s62, s61, 4096
    s_lshl_b32 s3, s41, 3
    s_add_u32 s3, s3, s19
    s_lshl_b32 s3, s3, 13
    s_lshl_b32 s55, s23, 7
    s_add_u32 s55, s55, s3
    v_lshrrev_b32 v5, 2, v0
    v_lshlrev_b32 v235, 11, v4
    v_lshl_add_u32 v235, v5, 3, v235
    s_mov_b32 s52, 0xffff0000
    s_mov_b32 s36, 0xffff
    s_mov_b32 s38, 0xbfb8aa3b
    s_mov_b32 s39, 0xbfb8aa3b
    s_lshr_b32 s3, s48, 2
    s_add_u32 s60, s3, {C_OFF:#x}
    """)
    srd(k, 32, 12, 131072)
    if o['outpre']:
        k("s_cmp_lg_u32 s18, 0\ns_cbranch_scc1 L_nooutpre\ns_mov_b64 exec, 15\nbuffer_load_dword v21, v235, s[32:35], s55 offen sc1\ns_mov_b64 exec, -1\nL_nooutpre:")
    if o['rotk']:
        rot_r(3)
        for j in range(7):
            k(f"s_lshl_b32 s37, s3, 10\ns_add_u32 s{4+j}, s37, s48\ns_lshl_b32 s37, s3, 8\ns_add_u32 s{CS[j]}, s37, s60")
            if j < 6: k("s_add_u32 s3, s3, 1\ns_cmp_eq_u32 s3, 7\ns_cselect_b32 s3, 0, s3")
    st.stamp(False)
    def dbg_load(): k("s_mov_b64 exec, 1\nbuffer_load_dword v18, v17, s[28:31], 0 offen sc1\ns_mov_b64 exec, -1")
    def dbg_wait(tag):
        k(f"""
        s_mov_b32 s40, 0
        L_dbg{tag}:
        s_waitcnt vmcnt(0)
        v_readfirstlane_b32 s46, v18
        s_add_u32 s40, s40, 1
        s_cmp_lg_u32 s46, 0
        s_cbranch_scc1 L_dbgok{tag}
        s_cmp_gt_u32 s40, {SPIN}
        s_cbranch_scc1 L_dbgok{tag}
        """)
        dbg_load()
        k(f"""
        s_branch L_dbg{tag}
        L_dbgok{tag}:
        s_and_b32 s56, s46, 0xff
        s_bfe_u32 s57, s46, 0x80008
        s_bfe_u32 s58, s46, 0x80010
        s_lshr_b32 s59, s46, 24
        """)
    k("s_cmp_lt_u32 s20, 18\ns_cbranch_scc1 L_ph1_skip")
    k(f"""
    ; x read addresses v8 (ks0), v9 (ks1):  token*128 + ((g ^ f)*16), token = 16tb + l%16, f = (token>>1)&7
    v_lshrrev_b32 v5, 1, v1
    v_xor_b32 v5, v5, v2
    v_lshlrev_b32 v5, 4, v5
    v_lshl_add_u32 v8, v1, 7, v5
    s_lshl_b32 s3, s21, 11
    s_add_u32 s3, s3, {XR}
    v_add_u32 v8, s3, v8
    v_xor_b32 v9, 64, v8
    ; W read addresses v10 (cb even), v11 (cb odd): (8g + r)*128 + ((cb ^ s)*32) + (l%4)*8 ; s = (r>>1) | (g&1)<<1
    v_lshl_add_u32 v5, v2, 3, v3
    v_lshlrev_b32 v5, 7, v5
    v_lshl_add_u32 v5, v4, 3, v5
    v_and_b32 v6, 1, v2
    v_lshlrev_b32 v6, 1, v6
    v_lshrrev_b32 v7, 1, v3
    v_or_b32 v6, v6, v7
    s_lshl_b32 s3, s22, 1
    v_xor_b32 v6, s3, v6
    v_lshl_add_u32 v10, v6, 5, v5
    v_xor_b32 v11, 32, v10
    s_sub_u32 s40, s20, 18
    s_and_b32 s3, s40, 1
    s_lshl_b32 s44, s19, 1
    s_add_u32 s44, s44, s3
    s_lshl_b32 s44, s44, 1
    s_add_u32 s44, s44, s21
    s_mul_i32 s44, s44, 14
    s_andn2_b32 s3, s40, 1
    s_add_u32 s44, s44, s3
    s_add_u32 s44, s44, s22
    s_lshl_b32 s45, s44, 8
    s_add_u32 s45, s45, {C_OFF:#x}
    s_lshl_b32 s44, s44, 10
    """)
    ACC = 24
    for r in range(16): k(f"v_mov_b32 v{ACC+r}, 0")
    def fr(p): return 40 + 20*p
    def reads(slot4, ks, p):
        b = fr(p)
        out = [f"ds_read_b128 v[{b}:{b+3}], v{8+ks} offset:{slot4*4096}"]
        for m in range(2):
            for c in range(2):
                for h in range(2):
                    r = b + 4 + 8*m + 4*c + 2*h
                    out.append(f"ds_read_b64_tr_b16 v[{r}:{r+1}], v{10+c} offset:{slot4*16384+m*8192+ks*4096+h*512}")
        return out
    def mfmas(p):
        b = fr(p); out = []
        for m in range(2):
            for c in range(2):
                a = ACC + 8*m + 4*c; w = b + 4 + 8*m + 4*c
                out.append(f"v_mfma_f32_16x16x32_bf16 v[{a}:{a+3}], v[{w}:{w+3}], v[{b}:{b+3}], v[{a}:{a+3}]")
        return out
    for r in range(fr(2), fr(4)): k(f"v_mov_b32 v{r}, 0")
    k("s_mov_b32 s40, 0")
    k("L_c1:")
    for slot in range(4):
        k("s_barrier")
        if slot == 2:
            k("s_cmp_lg_u32 s40, 3\ns_cbranch_scc1 L_nodbg2")
            dbg_load()
            k("L_nodbg2:")
        for ks in range(2):
            rd = reads(slot, ks, 2*(slot & 1) + ks); mm = mfmas(2*((slot+1) & 1) + ks)
            k("s_waitcnt lgkmcnt(9)")
            k(rd[0])
            for n in range(4):
                k(mm[n]); k(rd[1+2*n]); k(rd[2+2*n])
    k(f"""
    v_xor_b32 v8, 0x4000, v8
    v_xor_b32 v9, 0x4000, v9
    v_xor_b32 v10, 0x10000, v10
    v_xor_b32 v11, 0x10000, v11
    s_add_u32 s40, s40, 1
    s_cmp_lt_u32 s40, 4
    s_cbranch_scc1 L_c1
    s_waitcnt lgkmcnt(9)
    """)
    for l in mfmas(2): k(l)
    k("s_waitcnt lgkmcnt(0)")
    for l in mfmas(3): k(l)
    st.stamp(False)
    dbg_wait("W")
    T = 40
    for p in range(4): k(f"v_cvt_pk_bf16_f32 v{T+p}, v{ACC+2*p}, v{ACC+1+2*p}")
    for p in range(4): k(f"v_lshlrev_b32 v{ACC+2*p}, 16, v{T+p}\nv_and_b32 v{ACC+1+2*p}, s52, v{T+p}")
    if o['pk']:
        for p in range(4): k(f"v_pk_mul_f32 v[{T+2*p}:{T+2*p+1}], v[{ACC+2*p}:{ACC+2*p+1}], s[38:39]")
    else:
        for e in range(8): k(f"v_mul_f32 v{T+e}, s38, v{ACC+e}")
    for e in range(8): k(f"v_exp_f32 v{T+e}, v{T+e}")
    for p in range(4): k(f"v_cvt_pk_bf16_f32 v{T+8+p}, v{ACC+8+2*p}, v{ACC+9+2*p}")
    if o['pk']:
        for p in range(4): k(f"v_pk_add_f32 v[{T+2*p}:{T+2*p+1}], v[{T+2*p}:{T+2*p+1}], 1.0 op_sel_hi:[1,0]")
    else:
        for e in range(8): k(f"v_add_f32 v{T+e}, 1.0, v{T+e}")
    for e in range(8): k(f"v_rcp_f32 v{T+e}, v{T+e}")
    for p in range(4): k(f"v_and_b32 v{ACC+8+2*p}, s36, v{T+8+p}\nv_and_b32 v{ACC+9+2*p}, s52, v{T+8+p}")
    if o['pk']:
        for p in range(4): k(f"v_pk_mul_f32 v[{ACC+2*p}:{ACC+2*p+1}], v[{ACC+2*p}:{ACC+2*p+1}], v[{T+2*p}:{T+2*p+1}]")
    else:
        for e in range(8): k(f"v_mul_f32 v{ACC+e}, v{ACC+e}, v{T+e}")
    for p in range(4): k(f"v_cvt_pk_bf16_f32 v{T+p}, v{ACC+2*p}, v{ACC+1+2*p}")
    for e in range(8): k(f"v_dot2_f32_bf16 v{ACC+e}, v{T+e//2}, v{ACC+8+e}, 0")
    R = 228
    k("s_nop 0")
    for p in range(4): k(f"v_cvt_pk_bf16_f32 v{R+p}, v{ACC+2*p}, v{ACC+1+2*p}")
    fl = "" if o['plain'] else "sc1"
    k(f"""
    buffer_store_dwordx4 v[{R}:{R+3}], v16, s[24:27], s44 offen {fl}
    v_alignbit_b32 v236, v{R+2}, v{R+2}, 7
    v_bitop3_b32 v236, v{R}, v{R+1}, v236 bitop3:0x96
    v_bitop3_b32 v236, v236, v{R+3}, s46 bitop3:0x96
    buffer_store_dword v236, v17, s[24:27], s45 offen {fl}
    """)
    k("s_barrier")
    st.stamp(False)
    G = 32
    WF = 96
    A = 208
    extra = 0
    def hload(ks):
        if o['rotk']:
            k(f"buffer_load_dwordx4 v[{G+4*ks}:{G+4*ks+3}], v16, s[24:27], s{4+ks} offen sc1")
            k(f"buffer_load_dword v{60+ks}, v17, s[24:27], s{CS[ks]} offen sc1")
            return
        sb, off = (48, ks*1024) if ks < 4 else (49, (ks-4)*1024)
        k(f"buffer_load_dwordx4 v[{G+4*ks}:{G+4*ks+3}], v16, s[24:27], s{sb} offen offset:{off} sc1")
        k(f"buffer_load_dword v{60+ks}, v17, s[24:27], s60 offen offset:{ks*256} sc1")
    def wdreads(ks):
        for q in (2, 3, 0, 1):
            for h in range(2):
                r = WF + 16*ks + 4*q + 2*h
                k(f"ds_read_b64_tr_b16 v[{r}:{r+1}], v{12+q} offset:{ks*4096+h*2048}")
    def check(ks):
        g = G+4*ks
        return [f"s_waitcnt vmcnt({12-2*ks})", f"v_alignbit_b32 v24, v{g+2}, v{g+2}, 7\nv_bitop3_b32 v24, v{g}, v{g+1}, v24 bitop3:0x96", f"v_bitop3_b32 v24, v24, v{g+3}, v{60+ks} bitop3:0x96", "v_cmp_ne_u32 vcc, s46, v24"]
    ne = o['nd1']//2
    full = o['nd1'] == 14
    nb4 = o.get('nb4', ne)
    for ks in range(nb4): wdreads(ks)
    if not full: k("s_barrier")
    for ks in range(7): hload(ks)
    for ks in range(nb4, ne): wdreads(ks)
    if not full: k("s_barrier")
    k("s_branch L_ph2")
    k("L_ph1_skip:")
    k("s_barrier")
    if o['pre']:
        k(f"""
        s_cmp_lg_u32 s18, 0
        s_cbranch_scc1 L_nopre
        s_cmp_ge_u32 s20, 16
        s_cbranch_scc1 L_nopre
        v_lshlrev_b32 v20, 7, v0
        s_lshl_b32 s3, s19, 4
        s_add_u32 s3, s3, s20
        s_mul_i32 s40, s3, {28*128}
        s_mul_i32 s3, s3, {7*128}
        s_add_u32 s3, s3, {C_OFF - 28*128}
        v_mov_b32 v21, s40
        v_mov_b32 v22, s3
        v_cmp_gt_u32 vcc, 28, v0
        s_lshl_b32 s3, s19, 1
        s_and_b32 s40, s20, 1
        v_cndmask_b32 v21, v22, v21, vcc
        v_add_u32 v20, v20, v21
        s_add_u32 s3, s3, s40
        s_lshl_b32 s3, s3, 7
        s_add_u32 s3, s3, {A_OFF:#x}
        s_mov_b32 exec_hi, 15
        v_writelane_b32 v20, s3, 35
        buffer_load_dword v21, v20, s[24:27], 0 offen sc1
        s_mov_b64 exec, -1
        L_nopre:
        """)
    dbg_load()
    dbg_wait("H")
    if stamps: st.n = 2; st.stamp(False); st.stamp(False)
    k("s_barrier")
    hm = o.get('hmode', 'loadfirst')
    if hm == 'loadfirst':
        for ks in range(7): hload(ks)
        for ks in range(ne): wdreads(ks)
    elif hm == 'readfirst':
        for ks in range(7): wdreads(ks)
        k("s_waitcnt lgkmcnt(0)")
        for ks in range(7): hload(ks)
        k("s_branch L_ph2b")
    elif hm == 'probe':
        pk_ = o.get('probe', 6)
        hload(pk_)
        for ks in range(7): wdreads(ks)
        k("s_mov_b32 s40, 0\nL_probe:\ns_waitcnt vmcnt(0)")
        for l in check(pk_)[1:]: k(l)
        k(f"s_add_u32 s40, s40, 1\ns_cbranch_vccz L_probed\ns_cmp_gt_u32 s40, 12\ns_cbranch_scc1 L_probed")
        hload(pk_)
        k("s_branch L_probe\nL_probed:")
        for ks in range(7): hload(ks)
        k("s_branch L_ph2b")
    k("L_ph2:")
    st.stamp(False)
    for ks in range(ne, 7): wdreads(ks)
    k("L_ph2b:")
    k("s_mov_b32 s40, 0")
    for l in check(0): k(l)
    k("s_waitcnt lgkmcnt(0)" if stamps else "s_waitcnt lgkmcnt(14)")
    for ks in range(7):
        g = G+4*ks
        ck = check(ks+1) if ks < 6 else []
        k(f"L_h{ks}:\ns_cbranch_vccnz L_hf{ks}\nL_hgo{ks}:")
        if ks == 4: k("s_waitcnt lgkmcnt(0)")
        for n, q in enumerate((2, 3, 0, 1)):
            c = "0" if ks == 0 else f"v[{A+4*q}:{A+4*q+3}]"
            k(f"v_mfma_f32_16x16x32_bf16 v[{A+4*q}:{A+4*q+3}], v[{WF+16*ks+4*q}:{WF+16*ks+4*q+3}], v[{g}:{g+3}], {c}")
            if n == 0 and ck: k(ck[0]); k(ck[1])
            if n == 1 and ck: k(ck[2])
            if n == 2 and ck: k(ck[3])
    st.n += 1
    if stamps: k("s_mov_b32 s98, s40")
    st.stamp(False)
    k(f"""
    s_nop 4
    ds_write_b128 v232, v[{A+8}:{A+11}]
    s_nop 0
    ds_write_b128 v232, v[{A+12}:{A+15}] offset:1024
    s_waitcnt lgkmcnt(0)
    s_barrier
    ds_read_b128 v[24:27], v233
    ds_read_b128 v[28:31], v233 offset:1024
    s_waitcnt lgkmcnt(1)
    """)
    for d in range(4): k(f"v_add_f32 v{24+d}, v{24+d}, v{A+d}")
    for d in range(4): k(f"v_bfi_b32 v{24+d}, v234, s{56+d}, v{24+d}")
    k("buffer_store_dwordx4 v[24:27], v237, s[24:27], s53 offen sc1\ns_waitcnt lgkmcnt(0)")
    for d in range(4): k(f"v_add_f32 v{28+d}, v{28+d}, v{A+4+d}")
    for d in range(4): k(f"v_bfi_b32 v{28+d}, v234, s{56+d}, v{28+d}")
    k("buffer_store_dwordx4 v[28:31], v237, s[24:27], s53 offen offset:256 sc1")
    if o['plain'] and o['copy'] == 'late':
        k(f"""
        s_cmp_lt_u32 s20, 18
        s_cbranch_scc1 L_nocopy
        buffer_store_dwordx4 v[{R}:{R+3}], v16, s[24:27], s44 offen sc1
        buffer_store_dword v236, v17, s[24:27], s45 offen sc1
        L_nocopy:
        """)
    if o['plain'] and o['copy'] == 'ack':
        k(f"""
        s_cmp_lg_u32 s18, 3
        s_cbranch_scc1 L_nomark
        s_lshl_b32 s3, s19, 1
        s_add_u32 s3, s3, s41
        s_lshl_b32 s3, s3, 5
        s_add_u32 s3, s3, s23
        s_lshl_b32 s3, s3, 2
        s_add_u32 s3, s3, {A_OFF:#x}
        v_mov_b32 v21, s46
        s_mov_b64 exec, 1
        buffer_store_dword v21, v17, s[24:27], s3 offen
        s_mov_b64 exec, -1
        L_nomark:
        """)
    st.stamp(False)
    slowfin = f"""
    s_cmp_lt_u32 s40, {o['slow']}
    s_cbranch_scc1 L_rpoll
    s_and_b32 s3, s40, 3
    s_cmp_lg_u32 s3, 0
    s_cbranch_scc1 L_rpoll
    buffer_wbl2 sc1
    s_waitcnt vmcnt(0)
    s_branch L_rpoll
    """
    if o['fin'] == 'one':
        k("s_cmp_lg_u32 s18, 0\ns_cbranch_scc1 L_fin\ns_mov_b32 s40, 0")
        if o['finwait'] is not None: k(f"s_waitcnt vmcnt({o['finwait']})")
        st.stamp(False)
        k("L_rpoll:")
        for s in range(8):
            sb, off = (61, s*1024) if s < 4 else (62, (s-4)*1024)
            k(f"buffer_load_dwordx4 v[{32+4*s}:{35+4*s}], v16, s[24:27], s{sb} offen offset:{off} sc1")
        k("s_add_u32 s40, s40, 1\nv_mov_b32 v21, 0")
        mid = o['plain'] and o['copy'] == 'mid'
        if mid:
            k(f"""
            s_cmp_lg_u32 s40, 1
            s_cbranch_scc1 L_rw0
            s_cmp_lt_u32 s20, 18
            s_cbranch_scc1 L_rw0
            s_barrier
            buffer_store_dwordx4 v[{R}:{R+3}], v16, s[24:27], s44 offen sc1
            buffer_store_dword v236, v17, s[24:27], s45 offen sc1
            """)
            for s in range(8):
                k(f"s_waitcnt vmcnt({9-s})")
                for d in range(4): k(f"v_xor_b32 v{32+4*s+d}, s{56+d}, v{32+4*s+d}")
                k(f"v_or3_b32 v21, v{32+4*s}, v{33+4*s}, v21\nv_or3_b32 v21, v{34+4*s}, v{35+4*s}, v21")
                if s:
                    for d in range(2): k(f"v_pk_add_f32 v[{32+2*d}:{33+2*d}], v[{32+2*d}:{33+2*d}], v[{32+4*s+2*d}:{33+4*s+2*d}]")
            k("s_branch L_rw1\nL_rw0:")
        for s in range(8):
            k(f"s_waitcnt vmcnt({7-s})")
            for d in range(4): k(f"v_xor_b32 v{32+4*s+d}, s{56+d}, v{32+4*s+d}")
            k(f"v_or3_b32 v21, v{32+4*s}, v{33+4*s}, v21\nv_or3_b32 v21, v{34+4*s}, v{35+4*s}, v21")
            if s:
                for d in range(2): k(f"v_pk_add_f32 v[{32+2*d}:{33+2*d}], v[{32+2*d}:{33+2*d}], v[{32+4*s+2*d}:{33+4*s+2*d}]")
        k(f"""
        L_rw1:
        v_and_b32 v21, 0xff, v21
        v_cmp_ne_u32 vcc, 0, v21
        v_cvt_pk_bf16_f32 v32, v32, v33
        v_cvt_pk_bf16_f32 v33, v34, v35
        s_cbranch_vccnz L_rfail
        L_rdone:
        buffer_store_dwordx2 v[32:33], v235, s[32:35], s55 offen {o['outfl']}
        """)
    else:
        k(f"""
        s_mov_b32 s40, 0
        v_lshlrev_b32 v20, 10, v2
        v_lshl_add_u32 v20, v1, 4, v20
        s_lshl_b32 s3, s18, 8
        v_add_u32 v20, s3, v20
        v_lshlrev_b32 v22, 11, v1
        v_lshl_add_u32 v22, v2, 1, v22
        s_lshl_b32 s3, s18, 3
        v_add_u32 v22, s3, v22
        """)
        if o['finwait'] is not None: k(f"s_waitcnt vmcnt({o['finwait']})")
        st.stamp(False)
        k(f"""
        L_rpoll:
        buffer_load_dwordx4 v[32:35], v20, s[24:27], s61 offen sc1
        buffer_load_dwordx4 v[36:39], v20, s[24:27], s62 offen sc1
        s_add_u32 s40, s40, 1
        s_waitcnt vmcnt(1)
        """)
        for d in range(4): k(f"v_xor_b32 v{32+d}, s{56+d}, v{32+d}")
        k("v_or3_b32 v21, v32, v33, v34\ns_waitcnt vmcnt(0)")
        for d in range(4): k(f"v_xor_b32 v{36+d}, s{56+d}, v{36+d}")
        k(f"""
        v_or3_b32 v21, v35, v36, v21
        v_or3_b32 v21, v37, v38, v21
        v_pk_add_f32 v[32:33], v[32:33], v[36:37]
        v_pk_add_f32 v[34:35], v[34:35], v[38:39]
        v_or_b32 v21, v39, v21
        v_and_b32 v21, 0xff, v21
        v_permlane32_swap_b32 v32, v34
        v_permlane32_swap_b32 v33, v35
        v_cmp_ne_u32 vcc, 0, v21
        v_add_f32 v32, v32, v34
        v_add_f32 v33, v33, v35
        s_cbranch_vccnz L_rfail
        L_rdone:
        s_nop 0
        v_permlane16_swap_b32 v32, v33
        v_add_f32 v32, v32, v33
        v_cvt_pk_bf16_f32 v32, v32, v32
        buffer_store_short v32, v22, s[32:35], s55 offen {o['outfl']}
        """)
    st.stamp(False)
    if stamps:
        k("s_waitcnt vmcnt(0)"); st.stamp(False)
    if o['copy'] in ('mid', 'ack'): k("s_branch L_exit")
    k("L_fin:")
    if o['plain'] and o['copy'] == 'ack':
        k(f"""
        s_cmp_lg_u32 s18, 1
        s_cbranch_scc1 L_exit
        s_cmp_lt_u32 s20, 18
        s_cbranch_scc1 L_exit
        s_lshl_b32 s3, s19, 1
        s_and_b32 s40, s20, 1
        s_add_u32 s3, s3, s40
        s_lshl_b32 s3, s3, 7
        s_add_u32 s3, s3, {A_OFF:#x}
        s_mov_b32 s40, 0
        s_mov_b64 exec, 0xffff
        s_waitcnt vmcnt(0)
        L_apoll:
        buffer_load_dword v21, v17, s[24:27], s3 offen sc1
        s_add_u32 s40, s40, 1
        s_waitcnt vmcnt(0)
        v_cmp_ne_u32 vcc, s46, v21
        s_cmp_lt_u32 s40, {o['slow']}
        s_cbranch_vccz L_adone
        s_cbranch_scc1 L_apoll
        buffer_wbl2 sc1
        s_waitcnt vmcnt(0)
        L_adone:
        s_mov_b64 exec, -1
        """)
    if o['plain'] and o['copy'] in ('end', 'mid'):
        k(f"""
        s_cmp_lt_u32 s20, 18
        s_cbranch_scc1 L_exit
        s_barrier
        buffer_store_dwordx4 v[{R}:{R+3}], v16, s[24:27], s44 offen sc1
        buffer_store_dword v236, v17, s[24:27], s45 offen sc1
        """)
    k("L_exit:")
    if stamps:
        k("s_mul_i32 s3, s2, 8\ns_add_u32 s3, s3, s18")
        st.flush(16, 3, 1, 24, extra=(40,98))
    k("L_end:\ns_endpgm")
    for ks in range(7):
        k(f"""
        L_hf{ks}:
        s_add_u32 s40, s40, 1
        s_cmp_gt_u32 s40, {SPIN}
        s_cbranch_scc1 L_hgo{ks}
        s_waitcnt vmcnt(0)
        s_cmp_lt_u32 s40, {o['slow']}
        s_cbranch_scc1 L_hr{ks}
        s_and_b32 s3, s40, 3
        s_cmp_lg_u32 s3, 0
        s_cbranch_scc1 L_hr{ks}
        buffer_wbl2 sc1
        s_waitcnt vmcnt(0)
        buffer_inv sc1
        s_waitcnt vmcnt(0)
        L_hr{ks}:
        """)
        for j in range(ks, 7): hload(j)
        for l in check(ks): k(l)
        k(f"s_nop 1\ns_cbranch_vccnz L_hf{ks}")
        if extra: k("s_waitcnt vmcnt(0)")
        k(f"s_branch L_hgo{ks}")
    k(f"L_rfail:\ns_cmp_gt_u32 s40, {SPIN}\ns_cbranch_scc1 L_rdone")
    k(slowfin)
    k("L_tail:\ns_endpgm")
    open(fn, "w").write(emit([k], single=True))
    return fn

if __name__ == "__main__":
    fs = []
    V = dict(base={}, mid=dict(copy='mid', outfl='sc1'), nocopy=dict(copy='none'), fw1=dict(finwait=1), fwN=dict(finwait=None), norot=dict(rotk=False),
             re=dict(hmode='readfirst'), pr=dict(hmode='probe'), n12=dict(nd1=12, dplan=[14]*4+[15]*8), n10=dict(nd1=10, dplan=[14]*4+[15]*6),
             n10re=dict(nd1=10, dplan=[14]*4+[15]*6, hmode='readfirst'), b0=dict(nb4=0), b5=dict(nb4=5), xh=dict(xpf='h'), l10=dict(lah=10), xa2=dict(xa=2), xa4=dict(xa=4), nopk=dict(pk=False))
    fs = [gen(f"v9_{nm}.s", opt=V[nm]) for nm in V]
    fs2 = [gen(f"v9s_{nm}.s", stamps=True, opt=dict(V[nm], detail=True)) for nm in ('base',)]
    open("files2.txt","w").write(" ".join(fs2))
    print(" ".join(fs))
```

```python
import sys
src=open(sys.argv[1]).read()
NAME="standalone__swiglu_ffn__sampling_kernel"
def mk(out, wg, marker, nth=1, loader=True, after=True):
    s=src.replace(NAME+":\n", NAME+":\n    s_memrealtime s[90:91]\n",1)
    idx=-1
    for n in range(nth): idx=s.index(marker, idx+1)
    pos=idx+len(marker) if after else idx
    s=s[:pos]+"    s_memrealtime s[92:93]\n"+s[pos:]
    if loader:
        wr="""    s_cmp_lg_u32 s18, 4
    s_cbranch_scc1 L_dgw%d
    s_waitcnt lgkmcnt(0)
    s_sub_u32 s94, s92, s90
    v_mov_b32 v30, s94
    v_mov_b32 v31, 70000
    ds_write_b32 v31, v30
    s_waitcnt lgkmcnt(0)
L_dgw%d:
"""
        a="    s_waitcnt vmcnt(0)\n    s_barrier\n    s_branch L_ldexit\n"
        assert a in s
        s=s.replace(a, wr%(1,1)+a,1)
        a="L_wdwait:\n    s_waitcnt vmcnt(0)\n"
        s=s.replace(a, a+wr%(2,2),1)
        rd="""    v_mov_b32 v31, 70000
    ds_read_b32 v30, v31
    s_waitcnt lgkmcnt(0)
    v_readfirstlane_b32 s94, v30
"""
    else:
        rd="    s_waitcnt lgkmcnt(0)\n    s_sub_u32 s94, s92, s90\n"
    spin=f"""    s_cmp_lg_u32 s2, {wg}
    s_cbranch_scc1 L_dgx
    s_cmp_lg_u32 s18, 2
    s_cbranch_scc1 L_dgx
{rd}    s_waitcnt vmcnt(0)
    s_memrealtime s[96:97]
    s_waitcnt lgkmcnt(0)
    s_min_u32 s94, s94, 3000
    s_mul_i32 s94, s94, 20
    s_add_u32 s94, s94, s96
L_dspin:
    s_memrealtime s[96:97]
    s_waitcnt lgkmcnt(0)
    s_sub_u32 s95, s96, s94
    s_cmp_lt_i32 s95, 0
    s_cbranch_scc1 L_dspin
L_dgx:
"""
    s=s.replace("L_exit:\n","L_exit:\n"+spin,1)
    open(out,"w").write(s)
W=18*8+4; H=4
mk("dg_rdyW.s", W, "L_worker_go:\n")
mk("dg_rdyH.s", H, "L_pubdone:\n")
mk("dg_s0.s", W, "    s_barrier\n", 1)
mk("dg_s15.s", W, "    s_barrier\n", 16)
mk("dg_wdH.s", H, "L_wdwait:\n    s_waitcnt vmcnt(0)\n")
mk("dg_ph2.s", W, "L_ph2:\n", loader=False)
mk("dg_pst.s", W, "L_nomark:\n", loader=False)
mk("dg_end.s", W, "L_fin:\n", loader=False)
```

```python
import sys
src=open(sys.argv[1]).read()
NAME="standalone__swiglu_ffn__sampling_kernel"
def mk(out, wg, marker, nth=1, loader=True, after=True):
    s=src.replace(NAME+":\n", NAME+":\n    s_memrealtime s[90:91]\n",1)
    idx=-1
    for n in range(nth): idx=s.index(marker, idx+1)
    pos=idx+len(marker) if after else idx
    s=s[:pos]+"    s_memrealtime s[92:93]\n"+s[pos:]
    if loader:
        wr="""    s_cmp_lg_u32 s18, 4
    s_cbranch_scc1 L_dgw%d
    s_waitcnt lgkmcnt(0)
    s_sub_u32 s94, s92, s90
    v_mov_b32 v30, s94
    v_mov_b32 v31, 70000
    ds_write_b32 v31, v30
    s_waitcnt lgkmcnt(0)
L_dgw%d:
"""
        a="    s_waitcnt vmcnt(0)\n    s_barrier\n    s_branch L_ldexit\n"
        assert a in s
        s=s.replace(a, wr%(1,1)+a,1)
        a="L_wdwait:\n    s_waitcnt vmcnt(0)\n"
        s=s.replace(a, a+wr%(2,2),1)
        rd="""    v_mov_b32 v31, 70000
    ds_read_b32 v30, v31
    s_waitcnt lgkmcnt(0)
    v_readfirstlane_b32 s94, v30
"""
    else:
        rd="    s_waitcnt lgkmcnt(0)\n    s_sub_u32 s94, s92, s90\n"
    spin=f"""    s_cmp_lg_u32 s2, {wg}
    s_cbranch_scc1 L_dgx
    s_cmp_lg_u32 s18, 2
    s_cbranch_scc1 L_dgx
{rd}    s_waitcnt vmcnt(0)
    s_memrealtime s[96:97]
    s_waitcnt lgkmcnt(0)
    s_min_u32 s94, s94, 3000
    s_mul_i32 s94, s94, 100
    s_add_u32 s94, s94, s96
L_dspin:
    s_memrealtime s[96:97]
    s_waitcnt lgkmcnt(0)
    s_sub_u32 s95, s96, s94
    s_cmp_lt_i32 s95, 0
    s_cbranch_scc1 L_dspin
L_dgx:
"""
    s=s.replace("L_exit:\n","L_exit:\n"+spin,1)
    open(out,"w").write(s)
mk(sys.argv[2], int(sys.argv[3]) if len(sys.argv)>3 else 18*8+2, "L_fin:\n", loader=False)
```

```python
import sys
src=open(sys.argv[1]).read()
NAME="standalone__swiglu_ffn__sampling_kernel"
def mk(out, wg, marker, nth=1, loader=True, after=True):
    s=src.replace(NAME+":\n", NAME+":\n    s_memrealtime s[90:91]\n",1)
    idx=-1
    for n in range(nth): idx=s.index(marker, idx+1)
    pos=idx+len(marker) if after else idx
    s=s[:pos]+"    s_memrealtime s[92:93]\n"+s[pos:]
    if loader:
        wr="""    s_cmp_lg_u32 s18, 4
    s_cbranch_scc1 L_dgw%d
    s_waitcnt lgkmcnt(0)
    s_sub_u32 s94, s92, s90
    v_mov_b32 v30, s94
    v_mov_b32 v31, 70000
    ds_write_b32 v31, v30
    s_waitcnt lgkmcnt(0)
L_dgw%d:
"""
        a="    s_waitcnt vmcnt(0)\n    s_barrier\n    s_branch L_ldexit\n"
        assert a in s
        s=s.replace(a, wr%(1,1)+a,1)
        a="L_wdwait:\n    s_waitcnt vmcnt(0)\n"
        s=s.replace(a, a+wr%(2,2),1)
        rd="""    v_mov_b32 v31, 70000
    ds_read_b32 v30, v31
    s_waitcnt lgkmcnt(0)
    v_readfirstlane_b32 s94, v30
"""
    else:
        rd="    s_waitcnt lgkmcnt(0)\n    s_sub_u32 s94, s92, s90\n"
    spin=f"""    s_cmp_lg_u32 s2, {wg}
    s_cbranch_scc1 L_dgx
    s_cmp_lg_u32 s18, 2
    s_cbranch_scc1 L_dgx
{rd}    s_waitcnt vmcnt(0)
    s_memrealtime s[96:97]
    s_waitcnt lgkmcnt(0)
    s_min_u32 s94, s94, 3000
    s_mul_i32 s94, s94, 100
    s_add_u32 s94, s94, s96
L_dspin:
    s_memrealtime s[96:97]
    s_waitcnt lgkmcnt(0)
    s_sub_u32 s95, s96, s94
    s_cmp_lt_i32 s95, 0
    s_cbranch_scc1 L_dspin
L_dgx:
"""
    s=s.replace("L_exit:\n","L_exit:\n"+spin,1)
    open(out,"w").write(s)
W=18*8+2
mk("dh_c1.s", W, "L_c1:\n", loader=False, after=False)
mk("dh_s0.s", W, "    s_barrier\n", 1)
mk("dh_s2.s", W, "    s_barrier\n", 3)
mk("dh_rdyW.s", W, "    s_mov_b32 s24, s4\n", 1)
mk("dh_hc.s", 2, "L_helper_compute:\n", loader=False)
mk("dh_rdyH.s", 2, "    s_cselect_b64 s[28:29], s[8:9], s[6:7]\n", 1)
```

```python
import sys
src=open(sys.argv[1]).read()
NAME="standalone__swiglu_ffn__sampling_kernel"
def mk(out, wg, marker, nth=1, loader=True, after=True):
    s=src.replace("L_compute:\n", "L_compute:\n    s_memrealtime s[90:91]\n",1)
    idx=-1
    for n in range(nth): idx=s.index(marker, idx+1)
    pos=idx+len(marker) if after else idx
    s=s[:pos]+"    s_memrealtime s[92:93]\n"+s[pos:]
    if loader:
        wr="""    s_cmp_lg_u32 s18, 4
    s_cbranch_scc1 L_dgw%d
    s_waitcnt lgkmcnt(0)
    s_sub_u32 s94, s92, s90
    v_mov_b32 v30, s94
    v_mov_b32 v31, 70000
    ds_write_b32 v31, v30
    s_waitcnt lgkmcnt(0)
L_dgw%d:
"""
        a="    s_waitcnt vmcnt(0)\n    s_barrier\n    s_branch L_ldexit\n"
        assert a in s
        s=s.replace(a, wr%(1,1)+a,1)
        a="L_wdwait:\n    s_waitcnt vmcnt(0)\n"
        s=s.replace(a, a+wr%(2,2),1)
        rd="""    v_mov_b32 v31, 70000
    ds_read_b32 v30, v31
    s_waitcnt lgkmcnt(0)
    v_readfirstlane_b32 s94, v30
"""
    else:
        rd="    s_waitcnt lgkmcnt(0)\n    s_sub_u32 s94, s92, s90\n"
    spin=f"""    s_cmp_lg_u32 s2, {wg}
    s_cbranch_scc1 L_dgx
    s_cmp_lg_u32 s18, 2
    s_cbranch_scc1 L_dgx
{rd}    s_waitcnt vmcnt(0)
    s_memrealtime s[96:97]
    s_waitcnt lgkmcnt(0)
    s_min_u32 s94, s94, 3000
    s_mul_i32 s94, s94, 100
    s_add_u32 s94, s94, s96
L_dspin:
    s_memrealtime s[96:97]
    s_waitcnt lgkmcnt(0)
    s_sub_u32 s95, s96, s94
    s_cmp_lt_i32 s95, 0
    s_cbranch_scc1 L_dspin
L_dgx:
"""
    s=s.replace("L_exit:\n","L_exit:\n"+spin,1)
    open(out,"w").write(s)
mk(sys.argv[2], int(sys.argv[3]) if len(sys.argv)>3 else 18*8+2, "L_fin:\n", loader=False)
```
